```python
import torch

def _softmax(x, axis=-1):
    return torch.softmax(x, dim=axis)
def _gelu(x):
    return torch.nn.functional.gelu(x, approximate="tanh")
def _silu(x):
    return torch.nn.functional.silu(x)
def _sigmoid(x):
    return torch.sigmoid(x)
def _layernorm(x, axis=-1, eps=1e-5):
    m = x.mean(dim=axis, keepdim=True)
    v = x.var(dim=axis, keepdim=True, unbiased=False)
    return (x - m) / torch.sqrt(v + eps)
def _scatter_add(tgt, idx, src, axis=0):
    return tgt.clone().index_add_(axis, idx, src)
def _segment_sum(src, seg, n):
    out = torch.zeros((n,) + src.shape[1:], dtype=src.dtype)
    return out.index_add_(0, seg, src)
def _pad(x, pw):
    flat = tuple(v for pair in reversed(pw) for v in pair)
    return torch.nn.functional.pad(x, flat)

kernel_name = 'standalone__weight_only_int_quip_2__prompt'

def setup_inputs():

    _w = (lambda a: (lambda t: t.to(torch.bfloat16) if t.is_floating_point() else t)(torch.as_tensor(a)))
    B, S, D, F = 1, 2048, 576, 4608
    nbits = max(2, min(4, int(3)))
    G = 32 if 32 > 0 else D
    D = (D // G) * G
    ng = D // G
    qmax = 1 << nbits
    qw = torch.randint(0, qmax, (D, F)).to(torch.int32)
    zp = torch.randint(0, qmax, (ng, F)).to(float)
    sc = torch.abs((lambda *s: torch.randn(*s, dtype=torch.bfloat16) * 0.05)(ng, F)).to(float) * 0.1 + 0.02
    return {
        "x": _w((lambda *s: torch.randn(*s, dtype=torch.bfloat16) * 0.05)(B, S, D)),
        "qw": _w(qw),
        "scales": _w(sc),
        "zeros": _w(zp),
    }

def reference(x, qw, scales, zeros):
    B, S, D = x.shape
    ng, F = scales.shape
    G = D // ng
    s = (lambda x, n, axis: torch.repeat_interleave(x, n, dim=axis))(scales, G, axis=0)
    z = (lambda x, n, axis: torch.repeat_interleave(x, n, dim=axis))(zeros, G, axis=0)
    w = ((lambda x, dt: x.to(dt))(qw, x.dtype) - z) * s
    return torch.einsum("bsd,df->bsf", x, w)
```

```python
import sys
def hdr(name, grid, block, lds):
    return f"""; @launch grid=({grid},1,1) block=({block},1,1) lds={lds}
.amdgcn_target "amdgcn-amd-amdhsa--gfx950"
.text
.globl {name}
.p2align 8
.type {name},@function
{name}:
"""
def ftr(name, vg=256, sg=96):
    return f"""s_endpgm
.section .rodata,"a"
.p2align 6
.amdhsa_kernel {name}
  .amdhsa_next_free_vgpr {vg}
  .amdhsa_next_free_sgpr {sg}
  .amdhsa_accum_offset {vg}
  .amdhsa_group_segment_fixed_size 0
  .amdhsa_kernarg_size 56
  .amdhsa_user_sgpr_count 2
  .amdhsa_user_sgpr_kernarg_segment_ptr 1
  .amdhsa_system_sgpr_workgroup_id_x 1
.end_amdhsa_kernel
"""
open("empty.s","w").write(hdr("empty_kernel",256,512,153600)+ftr("empty_kernel"))
NCH=16
s=hdr("ifetch_kernel",256,64,0)
s+="""s_load_dwordx2 s[4:5], s[0:1], 48
s_mov_b32 s20, 0
s_waitcnt lgkmcnt(0)
s_mov_b32 s8, s4
s_mov_b32 s9, s5
s_mov_b32 s10, 0x1000000
s_mov_b32 s11, 0x20000
s_lshl_b32 s21, s2, 9
v_mov_b32 v10, s21
L_pass:
"""
for c in range(NCH):
    s+=f"s_memtime s[{30+2*c}:{31+2*c}]\n"
    for i in range(127):
        s+="v_add_u32_e64 v1, v2, v3\n"
s+=f"s_memtime s[{30+2*NCH}:{31+2*NCH}]\n"
s+="s_waitcnt lgkmcnt(0)\n"
for c in range(NCH):
    s+=f"s_sub_u32 s22, s{32+2*c}, s{30+2*c}\nv_mov_b32 v4, s22\nbuffer_store_dword v4, v10, s[8:11], 0 offen offset:{4*c}\n"
s+="""v_add_u32 v10, 64, v10
s_add_u32 s20, s20, 1
s_cmp_lt_u32 s20, 3
s_cbranch_scc1 L_pass
s_waitcnt vmcnt(0)
"""
s+=ftr("ifetch_kernel",64,96)
open("ifetch.s","w").write(s)
```

```python
from gen_mb1 import hdr, ftr
import subprocess
def gen(name, mode, flags="", waves=4, delay=0):
    s = hdr(name, 256, waves*64, 0)
    s += f"""s_memtime s[50:51]
s_memrealtime s[52:53]
s_load_dwordx2 s[4:5], s[0:1], 32
s_load_dwordx2 s[16:17], s[0:1], 48
v_readfirstlane_b32 s38, v0
v_and_b32 v1, 63, v0
s_lshr_b32 s38, s38, 6
s_lshr_b32 s36, s2, 3
s_and_b32 s36, s36, 7
s_and_b32 s37, s2, 7
s_lshl_b32 s37, s37, 2
s_lshr_b32 s30, s2, 6
s_add_u32 s37, s37, s30
s_waitcnt lgkmcnt(0)
s_mov_b32 s8, s4
s_mov_b32 s9, s5
s_mov_b32 s10, 18874368
s_mov_b32 s11, 0x20000
s_mov_b32 s18, 0x1000000
s_mov_b32 s19, 0x20000
v_mov_b32 v8, v0
v_mov_b32 v9, v0
v_mov_b32 v10, v0
v_mov_b32 v11, v0
"""
    rows_per_wave = 256 // waves
    if mode == "tile":
        s += f"""s_mul_i32 s30, s36, 2359296
s_mul_i32 s31, s38, {rows_per_wave*9216}
s_add_u32 s30, s30, s31
s_mul_i32 s31, s37, 288
s_add_u32 s30, s30, s31
s_and_b32 s33, s37, 1
s_lshl_b32 s32, s33, 5
s_add_u32 s32, s32, s30      ; main
s_xor_b32 s33, s33, 1
s_lshl_b32 s33, s33, 8
s_add_u32 s33, s33, s30      ; extra
v_lshrrev_b32 v2, 4, v1
v_mul_u32_u24 v2, {4*9216}, v2
v_and_b32 v3, 15, v1
v_lshl_add_u32 v4, v3, 4, v2
v_add_u32 v4, s32, v4
v_lshl_add_u32 v5, v3, 1, v2
v_add_u32 v5, s33, v5
s_memtime s[54:55]
"""
        for m in range(rows_per_wave//16):
            for r in range(4):
                s += f"s_mov_b32 s31, {(16*m+r)*9216}\nbuffer_store_dwordx4 v[8:11], v4, s[8:11], s31 offen {flags}\nbuffer_store_short v8, v5, s[8:11], s31 offen {flags}\n"
    if mode == "rows":
        s += f"""s_mul_i32 s30, s36, 2359296
s_mul_i32 s31, s38, {rows_per_wave*9216}
s_add_u32 s30, s30, s31
s_mul_i32 s31, s37, 288
s_add_u32 s30, s30, s31
"""
        n = rows_per_wave * 18 // 64
        for i in range(n):
            s += f"v_add_u32 v2, {64*i}, v1\nv_mul_u32_u24 v3, 3641, v2\nv_lshrrev_b32 v3, 16, v3\nv_mul_u32_u24 v4, 18, v3\nv_sub_u32 v4, v2, v4\nv_mul_u32_u24 v3, 9216, v3\nv_lshl_add_u32 v{16+i}, v4, 4, v3\n"
        s += "s_memtime s[54:55]\n"
        for i in range(n):
            s += f"buffer_store_dwordx4 v[8:11], v{16+i}, s[8:11], s30 offen {flags}\n"
    if mode == "lin":
        s += f"s_mul_i32 s30, s2, 73728\ns_mul_i32 s31, s38, {73728//waves}\ns_add_u32 s30, s30, s31\nv_lshlrev_b32 v4, 4, v1\ns_memtime s[54:55]\n"
        for i in range(72 // waves):
            s += f"buffer_store_dwordx4 v[8:11], v4, s[8:11], s30 offen {flags}\ns_add_u32 s30, s30, 1024\n"
    s += f"s_memtime s[56:57]\ns_waitcnt vmcnt(0)\ns_memtime s[60:61]\ns_memrealtime s[62:63]\ns_waitcnt lgkmcnt(0)\n"
    s += "v_mov_b32 v7, 0\n"
    for k, (a, b) in enumerate([(54, 50), (56, 50), (60, 50), (60, 50)]):
        s += f"s_sub_u32 s30, s{a}, s{b}\nv_writelane_b32 v7, s30, {k}\n"
    s += "v_writelane_b32 v7, s52, 4\nv_writelane_b32 v7, s62, 5\n"
    s += "s_lshl_b32 s31, s2, 3\ns_add_u32 s31, s31, s38\ns_lshl_b32 s31, s31, 8\nv_lshlrev_b32 v6, 2, v1\nbuffer_store_dword v7, v6, s[16:19], s31 offen\n"
    s += ftr(name, 128, 96)
    open(name + ".s", "w").write(s)
    subprocess.check_call(["python3", "mk.py", name + ".s", name + ".co"])
    return (name, waves)
cf = []
for mode in ("tile", "rows", "lin"):
    for waves in (4, 8):
        cf.append(gen(f"st_{mode}_w{waves}_kernel", mode, "", waves))
for fl, fn in (("nt", "nt"), ("sc1", "sc1"), ("sc0 sc1", "sc01")):
    cf.append(gen(f"st_rows_w8_{fn}_kernel", "rows", fl, 8))
sh = "#!/bin/bash\n"
for (n, w) in cf:
    sh += f"DUMPWS=524288 ./bench {n}.co 20 0 0 {n}:256:{w*64}:0 | grep event; ./ktrace.sh st_ {n}.co 20 0 0 {n}:256:{w*64}:0; python3 -c \"import numpy as np; w=np.fromfile('ws.bin',dtype=np.uint32).reshape(256,8,64)[:,:{w},:].reshape(-1,64).astype(np.int64); b=w[:,4].min(); print('{n}', 'med', np.median(w[:,:3],axis=0), 'max', w[:,:3].max(axis=0), 'rt start max', (w[:,4]-b).max(), 'rt end med/max', np.median(w[:,5]-b), (w[:,5]-b).max())\"\n"
open("run_st.sh", "w").write(sh)
print(" ".join(f'"work/{n}.co",' for n, w in cf))
```

```python
import re,sys
N="standalone__weight_only_int_quip_2__prompt_kernel"
SPIN="""
.globl spin_kernel
.p2align 8
.type spin_kernel,@function
spin_kernel:
s_cmp_lg_u32 s2, 0
s_cbranch_scc1 L_spin_end
s_load_dwordx2 s[4:5], s[0:1], 40
s_waitcnt lgkmcnt(0)
s_sub_u32 s4, s4, 512
s_subb_u32 s5, s5, 0
v_mov_b32 v1, 0
global_load_dwordx2 v[2:3], v1, s[4:5] sc0 sc1
s_waitcnt vmcnt(0)
v_not_b32 v3, v3
v_sub_u32 v2, v2, v3
s_nop 1
v_readfirstlane_b32 s6, v2
s_min_u32 s6, s6, 5000
s_mul_i32 s6, s6, 10
s_memrealtime s[8:9]
s_waitcnt lgkmcnt(0)
L_spin:
s_memrealtime s[10:11]
s_waitcnt lgkmcnt(0)
s_sub_u32 s12, s10, s8
s_cmp_lt_u32 s12, s6
s_cbranch_scc1 L_spin
L_spin_end:
s_endpgm
"""
SPINKD=""".p2align 6
.amdhsa_kernel spin_kernel
  .amdhsa_next_free_vgpr 32
  .amdhsa_next_free_sgpr 16
  .amdhsa_accum_offset 32
  .amdhsa_group_segment_fixed_size 0
  .amdhsa_kernarg_size 56
  .amdhsa_user_sgpr_count 2
  .amdhsa_user_sgpr_kernarg_segment_ptr 1
  .amdhsa_system_sgpr_workgroup_id_x 1
.end_amdhsa_kernel
"""
def rec(vt):
    return f"""s_memrealtime s[88:89]
s_waitcnt lgkmcnt(0)
v_mov_b32 v{vt}, s88
v_mov_b32 v{vt+1}, 0
s_not_b32 s90, s84
v_mov_b32 v{vt+2}, s90
s_mov_b64 s[92:93], exec
s_mov_b64 exec, 1
global_atomic_umax v{vt+1}, v{vt}, s[86:87]
global_atomic_umax v{vt+1}, v{vt+2}, s[86:87] offset:4
s_mov_b64 exec, s[92:93]
"""
def make(src, dst, marker, vt, nospin=False, before=False):
    s=open(src).read()
    m=re.search(r"; @launch grid=\((\d+),1,1\) block=\((\d+),1,1\) lds=(\d+)", s)
    s=s.replace(m.group(0), f"; @launch kernel={N} grid=({m.group(1)},1,1) block=({m.group(2)},1,1) lds={m.group(3)}\n; @launch kernel=spin_kernel grid=(1,1,1) block=(64,1,1) lds=0")
    s=s.replace("s_cbranch_scc1 L_end\n","s_cbranch_scc1 L_end\ns_memrealtime s[84:85]\ns_load_dwordx2 s[86:87], s[0:1], 40\n",1)
    if marker is not None:
        assert marker in s, marker
        s=s.replace(marker, (rec(vt)+marker) if before else (marker+rec(vt)),1)
    s=re.sub(r"next_free_sgpr \d+","next_free_sgpr 96",s)
    s=s.replace('.section .rodata,"a"', SPIN+'.section .rodata,"a"',1)+SPINKD
    open(dst,"w").write(s)
if __name__=="__main__":
    make("k1.s","../cdna_kernels/p0.s",None,0)
    make("k1.s","../cdna_kernels/p1.s","s_mul_i32 s51, s36, 294912\n",100)
    make("k1.s","../cdna_kernels/p2.s","s_waitcnt vmcnt(0)\ns_barrier\n",84)
    make("k1.s","../cdna_kernels/p3.s","s_cbranch_scc1 L_cloop\n",84)
    make("k1.s","../cdna_kernels/p4.s","s_endpgm\n.p2align 6\nL_producer:",84,before=True)
```

```python
import re,sys
N="standalone__weight_only_int_quip_2__prompt_kernel"
def spin(mult, stat):
    s="""
.globl spin_kernel
.p2align 8
.type spin_kernel,@function
spin_kernel:
s_cmp_lg_u32 s2, 0
s_cbranch_scc1 L_spin_end
s_load_dwordx2 s[4:5], s[0:1], 48
v_lshlrev_b32 v1, 5, v0
s_waitcnt lgkmcnt(0)
global_load_dwordx4 v[2:5], v1, s[4:5]
global_load_dwordx4 v[6:9], v1, s[4:5] offset:16
s_waitcnt vmcnt(0)
v_min_u32 v3, v3, v5
v_min_u32 v7, v7, v9
v_min_u32 v3, v3, v7
"""
    if stat=="max":
        s+="v_max_u32 v2, v2, v4\nv_max_u32 v6, v6, v8\nv_max_u32 v2, v2, v6\n"
    else:
        s+="v_min_u32 v2, v2, v4\nv_min_u32 v6, v6, v8\nv_min_u32 v2, v2, v6\n"
    s+="s_nop 1\nv_readlane_b32 s6, v2, 0\nv_readlane_b32 s7, v3, 0\n"
    for l in range(1,64):
        s+=f"v_readlane_b32 s8, v2, {l}\nv_readlane_b32 s9, v3, {l}\ns_nop 0\ns_{stat}_u32 s6, s6, s8\ns_min_u32 s7, s7, s9\n"
    s+=f"""s_sub_u32 s6, s6, s7
s_min_u32 s6, s6, 5000
s_mul_i32 s6, s6, {mult}
s_memrealtime s[8:9]
s_waitcnt lgkmcnt(0)
L_spin:
s_memrealtime s[10:11]
s_waitcnt lgkmcnt(0)
s_sub_u32 s12, s10, s8
s_cmp_lt_u32 s12, s6
s_cbranch_scc1 L_spin
L_spin_end:
s_endpgm
"""
    return s
SPINKD=""".p2align 6
.amdhsa_kernel spin_kernel
  .amdhsa_next_free_vgpr 32
  .amdhsa_next_free_sgpr 16
  .amdhsa_accum_offset 32
  .amdhsa_group_segment_fixed_size 0
  .amdhsa_kernarg_size 56
  .amdhsa_user_sgpr_count 2
  .amdhsa_user_sgpr_kernarg_segment_ptr 1
  .amdhsa_system_sgpr_workgroup_id_x 1
.end_amdhsa_kernel
"""
def stampcode():
    return "s_memrealtime s[88:89]\n"
def outcode(vt, wave):
    return f"""s_cmp_lg_u32 s38, {wave}
s_cbranch_scc1 L_norec
s_waitcnt lgkmcnt(0)
v_mov_b32 v{vt}, s88
v_mov_b32 v{vt+1}, s84
s_lshl_b32 s90, s2, 3
v_mov_b32 v{vt+2}, s90
s_mov_b64 exec, 1
global_store_dwordx2 v{vt+2}, v[{vt}:{vt+1}], s[86:87]
L_norec:
"""
def make(src, dst, marker, endmarker, vt, wave, mult=10, before=False, stat="max", pre=""):
    s=open(src).read()
    m=re.search(r"; @launch grid=\((\d+),1,1\) block=\((\d+),1,1\) lds=(\d+)", s)
    s=s.replace(m.group(0), f"; @launch kernel={N} grid=({m.group(1)},1,1) block=({m.group(2)},1,1) lds={m.group(3)}\n; @launch kernel=spin_kernel grid=(1,1,1) block=(64,1,1) lds=0")
    s=s.replace("s_cbranch_scc1 L_end\n","s_cbranch_scc1 L_end\ns_memrealtime s[84:85]\ns_load_dwordx2 s[86:87], s[0:1], 48\n",1)
    assert marker in s, marker
    assert endmarker in s, endmarker
    s=s.replace(endmarker, "@@OUT@@"+endmarker,1)
    if marker==endmarker: s=s.replace("@@OUT@@", pre+stampcode()+"@@OUT@@",1)
    else: s=s.replace(marker, (pre+stampcode()+marker) if before else (marker+pre+stampcode()),1)
    s=s.replace("@@OUT@@", outcode(vt,wave))
    s=re.sub(r"next_free_sgpr \d+","next_free_sgpr 96",s)
    s=s.replace('.section .rodata,"a"', spin(mult,stat)+'.section .rodata,"a"',1)+SPINKD
    open(dst,"w").write(s)
if __name__=="__main__":
    E="s_endpgm\n.p2align 6\nL_producer:"
    make("k1.s","../cdna_kernels/p0.s",E,E,110,0,mult=0)
    make("k1.s","../cdna_kernels/p1.s","s_mul_i32 s51, s36, 294912\n",E,110,0)
    make("k1.s","../cdna_kernels/p2.s","s_waitcnt vmcnt(0)\ns_barrier\n",E,110,0)
    make("k1.s","../cdna_kernels/p3.s","s_cbranch_scc1 L_cloop\n",E,110,0)
    make("k1.s","../cdna_kernels/p4.s",E,E,110,0,pre="s_waitcnt vmcnt(0)\n")
    make("k1.s","../cdna_kernels/p5.s","s_mul_i32 s51, s36, 294912\n",E,110,0,stat="min")
```

```python
import sys, argparse, re
ap = argparse.ArgumentParser()
A = ap.add_argument
A("-o", default="k7.s"); A("--name", default="standalone__weight_only_int_quip_2__prompt_kernel")
A("--stamp", type=int, default=0); A("--store", default="sc1"); A("--xstore", default="")
A("--nostore", type=int, default=0); A("--nomfma", type=int, default=0)
A("--prio", type=int, default=1); A("--pprio", type=int, default=0)
A("--rotg", type=int, default=1); A("--rots", type=int, default=3); A("--rotc", type=int, default=1)
A("--qflags", default=""); A("--aflags", default=""); A("--kill", default="")
A("--la", type=int, default=12); A("--bdelay", type=int, default=4); A("--split", type=int, default=2)
A("--dist", type=int, default=3); A("--vtail", type=int, default=6); A("--icpf", type=int, default=1)
A("--sgap", type=int, default=2); A("--wlazy", type=int, default=5); A("--laa", type=int, default=12); A("--maxa", type=int, default=16); A("--dgap", type=int, default=1); A("--npre", type=int, default=33); A("--gap", type=int, default=24); A("--gaps", type=int, default=8); A("--urg", type=int, default=4); A("--cds", type=int, default=10); A("--cvm", type=int, default=24); A("--map", type=int, default=0); A("--probe", type=int, default=-1); A("--pstat", default="max"); A("--pmult", type=int, default=10); A("--icn", type=int, default=8); A("--early", type=int, default=0); A("--plan", default="1,3,4,5,6,7,8,8,8"); A("--d0head", type=int, default=40); A("--la6", type=int, default=12); A("--atail", type=int, default=1)
args = ap.parse_args()

L = []
def e(s): L.append(s)
def el(l):
    for x in l: e(x)
NAME = args.name
QROW = 18432
WB = 98304; XO = 16384; SLOT = 18432
TBL = WB + 2 * SLOT; TZ = 10368
LDS = TBL + 2 * TZ
for l in open("standalone__weight_only_int_quip_2__prompt.s.ref").read().split("\n"):
    if l.startswith("; @launch"): break
    e(l)
e(f"; @launch grid=(256,1,1) block=(512,1,1) lds={LDS}")
e('.amdgcn_target "amdgcn-amd-amdhsa--gfx950"')
e(".text"); e(f".globl {NAME}"); e(".p2align 8"); e(f".type {NAME},@function"); e(f"{NAME}:")

nst = [0]
role = ["c"]
def stamp(lv=1):
    if args.probe >= 0:
        if role[0] == "c" and lv == 1:
            if nst[0] == args.probe: e("s_memrealtime s[88:89]")
            nst[0] += 1
        return
    if args.stamp == lv or (args.stamp == 3 and lv == 1):
        k = 66 + 2 * nst[0]; nst[0] += 1
        assert k <= 98, "too many stamps"
        e(f"s_{'memrealtime' if args.stamp == 3 else 'memtime'} s[{k}:{k+1}]")
def stamp_out(vt, vl):
    if args.stamp:
        e("s_memtime s[62:63]"); e("s_memrealtime s[100:101]"); e("s_waitcnt lgkmcnt(0)")
        e(f"v_mov_b32 v{vt}, 0")
        e(f"v_writelane_b32 v{vt}, s{60 if args.stamp == 3 else 64}, 0"); e(f"v_writelane_b32 v{vt}, s60, 1")
        e(f"v_writelane_b32 v{vt}, s{100 if args.stamp == 3 else 62}, 2"); e(f"v_writelane_b32 v{vt}, s100, 3")
        for i in range(nst[0]): e(f"v_writelane_b32 v{vt}, s{66+2*i}, {4+i}")
        e("s_lshl_b32 s51, s2, 3"); e("s_add_u32 s51, s51, s38"); e("s_lshl_b32 s51, s51, 8")
        e(f"v_mbcnt_lo_u32_b32 v{vl}, -1, 0"); e(f"v_mbcnt_hi_u32_b32 v{vl}, -1, v{vl}"); e(f"v_lshlrev_b32 v{vl}, 2, v{vl}")
        e("s_mov_b32 s4, s14"); e("s_mov_b32 s5, s15"); e("s_mov_b32 s6, 0x1000000"); e("s_mov_b32 s7, 0x20000")
        e(f"buffer_store_dword v{vt}, v{vl}, s[4:7], s51 offen")
def set_x(): return ["s_lshl_b32 s51, s37, 7", "s_add_u32 s16, s4, s51", "s_addc_u32 s17, s5, 0"]
def set_q(): return [f"s_mul_i32 s51, s37, {64*QROW}", "s_add_u32 s20, s6, s51", "s_addc_u32 s21, s7, 0"]
def step(): return ["s_add_u32 s37, s37, 1", "s_cmp_eq_u32 s37, 9", "s_cselect_b32 s37, 0, s37"]

e("s_cmp_ge_u32 s2, 256")
e("s_cbranch_scc1 L_end")
e("s_load_dwordx8 s[4:11], s[0:1], 0")
if args.icpf >= 2:
    e(f"s_cmp_ge_u32 s2, {args.icn}"); e("s_cbranch_scc1 L_noicpf")
    e("s_getpc_b64 s[56:57]"); e("L_pc:")
    e(f"s_sub_u32 s56, s56, L_pc - {NAME}"); e("s_subb_u32 s57, s57, 0")
    e("v_lshlrev_b32 v17, 7, v0")
    e(f"v_cmp_gt_u32 vcc, L_end - {NAME}, v17"); e("s_and_saveexec_b64 s[58:59], vcc"); e("s_cbranch_execz L_icpf2")
    e("global_load_dword v18, v17, s[56:57]")
    e("L_icpf2:"); e("s_mov_b64 exec, s[58:59]")
    e("L_noicpf:")
e("s_load_dwordx2 s[12:13], s[0:1], 32")
if args.probe >= 0:
    e("s_memrealtime s[84:85]"); e("s_load_dwordx2 s[86:87], s[0:1], 48")
if args.stamp:
    e("s_load_dwordx2 s[14:15], s[0:1], 48")
    e("s_memtime s[64:65]"); e("s_memrealtime s[60:61]")
e("v_readfirstlane_b32 s38, v0")
VL = 19
e(f"v_and_b32 v{VL}, 63, v0")
if args.map == 0:
    e("s_lshr_b32 s36, s2, 3"); e("s_and_b32 s36, s36, 7")
    e("s_and_b32 s37, s2, 7"); e("s_mul_i32 s37, s37, 576")
    e("s_lshr_b32 s51, s2, 6")
elif args.map == 2:
    e("s_and_b32 s36, s2, 7"); e("s_lshr_b32 s37, s2, 5"); e("s_mul_i32 s37, s37, 576"); e("s_lshr_b32 s51, s2, 3"); e("s_and_b32 s51, s51, 3")
elif args.map == 3:
    e("s_lshr_b32 s36, s2, 5"); e("s_lshr_b32 s37, s2, 2"); e("s_and_b32 s37, s37, 7"); e("s_lshr_b32 s51, s2, 5"); e("s_add_u32 s37, s37, s51"); e("s_and_b32 s37, s37, 7"); e("s_mul_i32 s37, s37, 576"); e("s_and_b32 s51, s2, 3")
else:
    e("s_lshr_b32 s36, s2, 3"); e("s_and_b32 s36, s36, 3"); e("s_and_b32 s51, s2, 1"); e("s_lshl_b32 s51, s51, 2"); e("s_add_u32 s36, s36, s51")
    e("s_and_b32 s37, s2, 6"); e("s_lshr_b32 s51, s2, 7"); e("s_add_u32 s37, s37, s51"); e("s_mul_i32 s37, s37, 576")
    e("s_lshr_b32 s51, s2, 5"); e("s_and_b32 s51, s51, 3")
e(f"s_mul_i32 s3, s51, {args.rotc}"); e("s_add_u32 s3, s3, s36")
e(f"s_mul_i32 s52, s3, {(65536 + args.rotg - 1)//args.rotg}"); e("s_lshr_b32 s52, s52, 16"); e(f"s_mul_i32 s52, s52, {args.rotg}")
e("s_sub_u32 s3, s3, s52"); e(f"s_mul_i32 s3, s3, {args.rots}")
e("s_lshl_b32 s55, s51, 7"); e("s_add_u32 s55, s55, s37")
e("s_lshl_b32 s54, s51, 4"); e("s_add_u32 s54, s54, s37"); e("s_add_u32 s54, s54, 512")
e("s_lshr_b32 s38, s38, 6")
e("s_and_b32 s39, s38, 3")
e("s_mov_b32 s37, s3")
e("s_cmp_ge_u32 s38, 4")
e("s_cbranch_scc1 L_producer")

FB, GB, vB, vX, vD, vG, vGx = 0, 4, 6, 7, 8, 10, 11
POOL = list(range(12, 112, 4))
ACC = 112
def acc(t, n): return ACC + (t * 4 + n) * 16
def accx(m): return ACC + 128 + 4 * m
for rnd in range(2):
    vg, vo, va = 120 + 4 * rnd, 121 + 4 * rnd, 122 + 4 * rnd
    e(f"v_lshl_add_u32 v{va}, s39, 6, v{VL}")
    if rnd: e(f"v_add_u32 v{va}, 256, v{va}")
    e(f"v_mul_u32_u24 v{vg}, 3641, v{va}"); e(f"v_lshrrev_b32 v{vg}, 16, v{vg}")
    e(f"v_mul_u32_u24 v{vo}, 18, v{vg}"); e(f"v_sub_u32 v{vo}, v{va}, v{vo}")
    e("s_sub_u32 s51, s54, 128")
    e(f"v_mov_b32 v{va}, s51"); e(f"v_mov_b32 v{va+1}, s55")
    e(f"v_cmp_gt_u32 vcc, 16, v{vo}"); e("s_nop 1")
    e(f"v_cndmask_b32 v{va}, v{va}, v{va+1}, vcc")
    e(f"v_lshl_add_u32 v{va}, v{vo}, 3, v{va}")
    e(f"v_mul_u32_u24 v{va+1}, 4608, v{vg}")
    e(f"v_add_lshl_u32 v{va}, v{va}, v{va+1}, 1")
e("s_mov_b32 s26, 165888"); e("s_mov_b32 s27, 0x20000"); e("s_mov_b32 s30, 165888"); e("s_mov_b32 s31, 0x20000")
e("s_mul_i32 s50, s36, 294912")
e("s_waitcnt lgkmcnt(0)")
e("s_mov_b32 s24, s8"); e("s_mov_b32 s25, s9"); e("s_mov_b32 s28, s10"); e("s_mov_b32 s29, s11")

def cost(s):
    if s.startswith("ds_read_b128"): return args.cds
    if s.startswith("ds_read_b64"): return 8
    if s.startswith("buffer_load"): return args.cvm
    if s.startswith("buffer_store"): return 36
    if s.startswith("v_mfma"): return 0
    if s.startswith("v_"): return 5
    return 4
def acost(a):
    c = 0
    for x in a:
        if callable(x): c += getattr(x, "cost", 4)
        else: c += cost(x[1] if isinstance(x, tuple) else x)
    return c
class Sched:
    def __init__(self):
        self.ds = []; self.dsat = []; self.done = 0; self.vm = []; self.vdone = 0; self.slot = 0; self.mf = {}; self.now = 0; self.spent = 0
    def ins(self, s):
        e(s); self.slot += 1; self.spent += cost(s)
    def dsop(self, s, tag):
        if len(self.ds) - self.done >= 15:
            self.ins("s_waitcnt lgkmcnt(10)"); self.done = len(self.ds) - 10
        self.ins(s); self.ds.append(tag); self.dsat.append(self.now)
    def vmop(self, s, tag):
        self.ins(s); self.vm.append(tag)
    def need(self, tags, lazy=True):
        idx = max(len(self.ds) - 1 - self.ds[::-1].index(t) for t in tags)
        if idx >= self.done:
            if lazy:
                while idx + 1 < len(self.ds) and self.now - self.dsat[idx + 1] >= args.wlazy: idx += 1
            self.ins(f"s_waitcnt lgkmcnt({len(self.ds) - 1 - idx})"); self.done = idx + 1
    def needv(self, tag):
        idx = len(self.vm) - 1 - self.vm[::-1].index(tag)
        if idx >= self.vdone:
            self.ins(f"s_waitcnt vmcnt({len(self.vm) - 1 - idx})"); self.vdone = idx + 1
    def mfma(self, d, a, b, zero, big):
        n = 16 if big else 4
        c = "0" if zero else f"v[{d}:{d+n-1}]"
        op = "v_mfma_f32_32x32x16_bf16" if big else "v_mfma_f32_16x16x32_bf16"
        if args.nomfma: self.ins("s_nop 0")
        else: self.ins(f"{op} v[{d}:{d+n-1}], v[{a}:{a+3}], v[{b}:{b+3}], {c}")
        self.mf[d] = (self.slot, 12 if big else 8)
    def valu_reads(self, ds):
        for d in ds:
            at, need = self.mf[d]
            gap = self.slot - at
            if gap < need:
                self.ins(f"s_nop {need - 1 - gap}"); self.slot += need - 1 - gap
    def atom(self, a):
        for x in a:
            if callable(x): x()
            elif isinstance(x, tuple) and x[0] == "ds": self.dsop(x[1], x[2])
            elif isinstance(x, tuple) and x[0] == "vm": self.vmop(x[1], x[2])
            else: self.ins(x)
S = Sched()
for rnd in range(2):
    d = 128 + 8 * rnd
    S.vmop(f"buffer_load_dwordx4 v[{d}:{d+3}], v{122+4*rnd}, s[24:27], 0 offen", "T")
    S.vmop(f"buffer_load_dwordx4 v[{d+4}:{d+7}], v{122+4*rnd}, s[28:31], 0 offen", "T")
e("s_add_u32 s4, s4, s50"); e("s_addc_u32 s5, s5, 0"); e("s_mov_b32 s18, 293888"); e("s_mov_b32 s19, 0x20000")
el(set_x())
e("s_mul_i32 s51, s36, 2359296")
e("s_add_u32 s32, s12, s51"); e("s_addc_u32 s33, s13, 0"); e("s_mov_b32 s34, 2359296"); e("s_mov_b32 s35, 0x20000")
e("s_mul_i32 s53, s39, 24576")
for i in range(1, 8): e(f"s_mov_b32 s{40+i}, {i * 8192 if i < 4 else i * 9216 - (i - 4) * 1024}")
if args.prio: e(f"s_setprio {args.prio}")
e(f"v_lshrrev_b32 v112, 3, v{VL}"); e("s_lshl_b32 s52, s39, 6"); e("v_add_u32 v112, s52, v112"); e("v_mul_u32_u24 v112, 1152, v112")
e(f"v_lshrrev_b32 v113, 4, v{VL}"); e(f"v_and_b32 v{vD}, 7, v{VL}"); e(f"v_xor_b32 v{vD}, v113, v{vD}")
e(f"v_lshl_add_u32 v{vD}, v{vD}, 4, v112"); e(f"v_xor_b32 v{vD+1}, 64, v{vD}")
e(f"v_and_b32 v112, 31, v{VL}"); e(f"v_lshrrev_b32 v113, 5, v{VL}")
e("v_bfe_u32 v114, v112, 1, 3"); e("v_xor_b32 v114, v113, v114"); e("v_lshlrev_b32 v114, 4, v114")
e("v_lshl_add_u32 v114, v112, 7, v114"); e(f"v_add_u32 v{FB}, s53, v114")
for u in range(1, 4): e(f"v_xor_b32 v{FB+u}, {32*u}, v{FB}")
e("v_lshl_add_u32 v114, v113, 2, s52"); e(f"v_bfe_u32 v115, v{VL}, 4, 1"); e("v_add_u32 v114, v114, v115"); e("v_mul_u32_u24 v114, 9216, v114")
e(f"v_and_b32 v116, 15, v{VL}"); e("v_lshl_add_u32 v114, v116, 4, v114")
e("s_lshl_b32 s51, s55, 1"); e(f"v_add_u32 v{vG}, s51, v114")
e(f"v_lshl_add_u32 v{vB}, v116, 1, v115"); e(f"v_lshlrev_b32 v{vB}, 4, v{vB}"); e(f"v_lshl_add_u32 v{vB}, v113, 9, v{vB}"); e(f"v_add_u32 v{vB}, {WB}, v{vB}")
e(f"v_and_b32 v112, 15, v{VL}"); e(f"v_lshrrev_b32 v113, 4, v{VL}")
e("v_lshrrev_b32 v114, 1, v112"); e("v_xor_b32 v114, v113, v114"); e("v_lshlrev_b32 v114, 4, v114"); e("v_lshl_add_u32 v114, v112, 7, v114")
e(f"v_add_u32 v{GB}, s53, v114"); e(f"v_xor_b32 v{GB+1}, 64, v{GB}")
e("v_add_u32 v114, s52, v112"); e("v_mul_u32_u24 v114, 9216, v114"); e("v_lshl_add_u32 v114, v113, 3, v114")
e("s_lshl_b32 s51, s54, 1"); e(f"v_add_u32 v{vGx}, s51, v114")
e("v_lshrrev_b32 v114, 1, v113"); e("v_and_b32 v115, 1, v113"); e(f"v_lshlrev_b32 v{vX}, 9, v114"); e(f"v_lshl_add_u32 v{vX}, v115, 7, v{vX}")
e(f"v_lshl_add_u32 v{vX}, v112, 3, v{vX}"); e(f"v_add_u32 v{vX}, {WB + XO}, v{vX}")
for rnd in range(2):
    vg, vo, va = 120 + 4 * rnd, 121 + 4 * rnd, 122 + 4 * rnd
    e("s_lshl_b32 s51, s3, 1")
    e(f"v_subrev_u32 v{va}, s51, v{vg}"); e(f"v_add_u32 v{va+1}, 18, v{va}"); e(f"v_min_u32 v{va}, v{va}, v{va+1}")
    e(f"v_mul_u32_u24 v{va}, 576, v{va}"); e(f"v_lshl_add_u32 v{va}, v{vo}, 5, v{va}")
    e(f"v_add_u32 v{va}, {TBL}, v{va}")
def dma_half(s, t, srd="s[16:19]"):
    out = []
    for i in range(4 * t, 4 * t + 4):
        if i % 4 == 0: out.append([f"s_add_u32 m0, s53, {(s % 3) * 8192 + t * 4096}", "s_nop 0"])
        so = "0" if i == 0 else f"s{40+i}"
        out.append([("vm", f"buffer_load_dwordx4 v{vD + (i & 1)}, {srd}, {so} offen offset:{(i & 3)*1024} {args.aflags} lds", ("A", s, t))])
    return out
def dma_atoms(s):
    if args.atail and args.split == 2 and s == 7:
        return dma_half(7, 0) + [["s_mov_b32 s24, s16", "s_mov_b32 s25, s17", "s_mov_b32 s26, 293888"] + step() + set_x()]
    if args.atail and args.split == 2 and s == 8:
        return dma_half(8, 0) + dma_half(7, 1, "s[24:27]") + dma_half(8, 1)
    return dma_half(s, 0) + dma_half(s, 1) + [step() + set_x()]
if args.early:
    for a in dma_atoms(0): S.atom(a)
S.needv("T")
for rnd in range(2):
    vg, va = 120 + 4 * rnd, 122 + 4 * rnd
    d = 128 + 8 * rnd
    Sr, Z = 144 + 16 * rnd, 152 + 16 * rnd
    if rnd:
        e(f"v_cmp_gt_u32 vcc, 18, v{vg}"); e("s_and_saveexec_b64 s[56:57], vcc"); e("s_cbranch_execz L_tskip")
    for p in range(4):
        e(f"v_lshlrev_b32 v{Sr+2*p}, 16, v{d+p}"); e(f"v_and_b32 v{Sr+2*p+1}, 0xffff0000, v{d+p}")
        e(f"v_lshlrev_b32 v{Z+2*p}, 16, v{d+4+p}"); e(f"v_and_b32 v{Z+2*p+1}, 0xffff0000, v{d+4+p}")
    for p in range(8): e(f"v_mul_f32 v{Z+p}, v{Z+p}, v{Sr+p}")
    e(f"ds_write_b128 v{va}, v[{Sr}:{Sr+3}]"); e(f"ds_write_b128 v{va}, v[{Sr+4}:{Sr+7}] offset:16")
    e(f"ds_write_b128 v{va}, v[{Z}:{Z+3}] offset:{TZ}"); e(f"ds_write_b128 v{va}, v[{Z+4}:{Z+7}] offset:{TZ+16}")
    if rnd:
        e("L_tskip:"); e("s_mov_b64 exec, s[56:57]")
e("s_waitcnt lgkmcnt(0)")
e("s_barrier")
stamp()
PRE = [x for s in ((1, 2) if args.early else (0, 1, 2)) for x in dma_atoms(s)]
npre = args.npre
for a in PRE[:npre]: S.atom(a)

frs = []
mf = []
def frag(kind, s, base, off, t=None):
    frs.append(dict(kind=kind, s=s, base=base, off=off, t=t, first=None, last=None)); return len(frs) - 1
def section(s, tiles):
    for h in range(2):
        xf = None
        for uu in range(2):
            u = 2 * h + uu
            F = {t: frag("F", s, FB + u, (s % 3) * 8192 + t * 4096, t) for t in tiles}
            ms = [2 * t + uu for t in tiles]
            for n in range(4):
                b = frag("B", s, vB, (s & 1) * SLOT + (u * 4 + n) * 1024)
                for t in tiles: mf.append([acc(t, n), F[t], b, s == 0 and u == 0, True, s])
                if n % 2 == 1 and (n // 2) < len(ms):
                    if xf is None: xf = frag("X", s, vX, (s & 1) * SLOT + h * 1024)
                    m = ms[n // 2]
                    g = frag("G", s, GB + h, (s % 3) * 8192 + m * 2048, m // 2)
                    mf.append([accx(m), xf, g, s == 0 and h == 0, False, s])
marks = {}
for s in range(9 - args.split):
    marks[len(mf)] = ("stage", s); section(s, (0, 1))
if args.split:
    for t in (0, 1):
        for s in range(9 - args.split, 9):
            marks[len(mf)] = ("half", s, t); section(s, (t,))
for i, m in enumerate(mf):
    for f in (m[1], m[2]):
        if frs[f]["first"] is None: frs[f]["first"] = i
        frs[f]["last"] = i
ordA = sorted([f for f in range(len(frs)) if frs[f]["kind"] in "FG"], key=lambda f: frs[f]["first"])
ordW = sorted([f for f in range(len(frs)) if frs[f]["kind"] in "BX"], key=lambda f: frs[f]["first"])
RES = POOL[-3:]
pool = list(POOL[:-3]); where = {}; nA = [0]; nW = [0]; barred = set(); side = []; heldA = [0]
lasta = {}
for f in ordA: lasta[frs[f]["s"]] = f
issued_at = {}
def emit_read(f, i):
    fr = frs[f]
    r = pool.pop(0); where[f] = r; issued_at[f] = i
    if fr["kind"] == "X":
        S.dsop(f"ds_read_b64_tr_b16 v[{r}:{r+1}], v{fr['base']} offset:{fr['off']}", ("R0", f))
        S.dsop(f"ds_read_b64_tr_b16 v[{r+2}:{r+3}], v{fr['base']} offset:{fr['off']+256}", ("R", f))
    else:
        S.dsop(f"ds_read_b128 v[{r}:{r+3}], v{fr['base']} offset:{fr['off']}", ("R", f))
def try_A(i, force=False):
    if nA[0] >= len(ordA) or not pool: return False
    f = ordA[nA[0]]; fr = frs[f]; s = fr["s"]
    if not force and (fr["first"] - i > args.laa or heldA[0] >= args.maxa): return False
    if ("A", s, fr["t"]) not in S.vm:
        assert not force
        return False
    S.needv(("A", s, fr["t"]))
    emit_read(f, i); nA[0] += 1; heldA[0] += 1
    if f == lasta[s] and s + 3 <= 8:
        side.extend([[], [], [lambda f=f: S.need([("R", f)], lazy=False)]])
        side.extend(x for a in dma_atoms(s + 3) for x in [a] + [[]] * args.dgap)
    return True
def try_W(i, force=False):
    if nW[0] >= len(ordW) or not pool: return False
    f = ordW[nW[0]]; fr = frs[f]; s = fr["s"]
    if not force and fr["first"] - i > (args.la6 if mf[i][5] == 8 - args.split else args.la): return False
    if s not in barred:
        prevw = ordW[nW[0] - 1]
        if not force and i - issued_at[prevw] < args.bdelay and fr["first"] - i > 2: return False
        S.need([("R", prevw)], lazy=False)
        S.ins("s_barrier"); barred.add(s)
        if s in (1, 4, 7, 8): stamp()
    emit_read(f, i); nW[0] += 1
    return True
def store_atoms(t):
    at = []
    for q in range(4):
        for r in (0, 2):
            k = 4 * q + r
            def go(k=k, q=q, r=r):
                S.valu_reads([acc(t, n) for n in range(4)])
                tmp = TMP[(k // 2) % len(TMP)]
                S.ins(f"v_cvt_pk_bf16_f32 v{tmp}, v{acc(t,0)+k}, v{acc(t,1)+k}"); S.ins(f"v_cvt_pk_bf16_f32 v{tmp+2}, v{acc(t,0)+k+1}, v{acc(t,1)+k+1}")
                S.ins(f"v_cvt_pk_bf16_f32 v{tmp+1}, v{acc(t,2)+k}, v{acc(t,3)+k}"); S.ins(f"v_cvt_pk_bf16_f32 v{tmp+3}, v{acc(t,2)+k+1}, v{acc(t,3)+k+1}")
                S.ins(f"s_mov_b32 s52, {(32*t + 8*q + r) * 9216}")
                S.ins(f"v_permlane16_swap_b32 v{tmp}, v{tmp+2}"); S.ins(f"v_permlane16_swap_b32 v{tmp+1}, v{tmp+3}")
                if not args.nostore: S.vmop(f"buffer_store_dwordx4 v[{tmp}:{tmp+3}], v{vG}, s[32:35], s52 offen {args.store}", "O")
            go.cost = 70
            at.append([go])
    for m in (2 * t, 2 * t + 1):
        a = accx(m)
        def gx(a=a, m=m):
            S.valu_reads([a])
            S.ins(f"v_cvt_pk_bf16_f32 v{a}, v{a}, v{a+1}"); S.ins(f"v_cvt_pk_bf16_f32 v{a+1}, v{a+2}, v{a+3}")
            S.ins(f"s_mov_b32 s52, {16*m*9216}")
            if not args.nostore: S.vmop(f"buffer_store_dwordx2 v[{a}:{a+1}], v{vGx}, s[32:35], s52 offen {args.xstore}", "O")
        gx.cost = 50
        at.append([gx])
    return at
TMP = []
S.ins("s_barrier"); barred.add(0); stamp()
side.extend(PRE[npre:])
try_A(0); try_W(0); try_A(0); try_W(0); try_W(0); try_A(0); try_W(0); try_W(0)
waited = 0
for i, m in enumerate(mf):
    d, fa, fb, zero, big, s = m
    S.now = i
    if i in marks:
        mk = marks[i]
        if mk[0] == "half" and mk[2] == 1 and s == 9 - args.split:
            stamp()
            assert not side
            TMP.extend(RES)
            side.extend(x for a in store_atoms(0) for x in [a] + [[]] * args.sgap)
    for f in (fa, fb):
        while f not in where:
            assert (try_A if frs[f]["kind"] in "FG" else try_W)(i, True), i
    S.need([("R", fa), ("R", fb)])
    S.mfma(d, where[fa], where[fb], zero, big)
    for f in (fa, fb):
        if frs[f]["last"] == i:
            pool.append(where[f])
            if frs[f]["kind"] in "FG": heldA[0] -= 1
    if not args.gap:
        k = 0
        if try_W(i): k += 1
        if try_A(i): k += 1
        if k < 2: try_W(i)
        if side: S.atom(side.pop(0))
        continue
    budget = (args.gap if big else args.gaps); S.spent = 0
    def urgent(q, n): return n[0] < len(q) and frs[q[n[0]]]["first"] - i <= args.urg
    if side and not side[0]: side.pop(0)
    elif side and not (urgent(ordW, nW) or urgent(ordA, nA)) and (acost(side[0]) <= budget or (big and waited >= 2)):
        S.atom(side.pop(0)); waited = 0
    elif side: waited += 1
    while True:
        if S.spent + args.cds > budget + 2 and not (S.spent == 0 and (urgent(ordW, nW) or urgent(ordA, nA))): break
        fw = frs[ordW[nW[0]]]["first"] if nW[0] < len(ordW) else 1 << 30
        fa_ = frs[ordA[nA[0]]]["first"] if nA[0] < len(ordA) else 1 << 30
        tries = (try_W, try_A) if fw <= fa_ else (try_A, try_W)
        if not (tries[0](i) or tries[1](i)): break
while side: S.atom(side.pop(0))
stamp()
TMP.extend(pool[:5])
for t in ((1,) if args.split else (0, 1)):
    for a in store_atoms(t): S.atom(a)
stamp()
if args.stamp: e("s_waitcnt vmcnt(0)")
stamp_out(0, 1)
if args.probe >= 0:
    import mkprobe
    if args.probe == 9: e("s_waitcnt vmcnt(0)"); e("s_memrealtime s[88:89]")
    e(mkprobe.outcode(0, 0))
role[0] = "p"
e("s_endpgm")

nst[0] = 0
e(".p2align 6")
e("L_producer:")
PLAN = [int(x) for x in args.plan.split(',')]
NS = max(PLAN[i] - i for i in range(9)) + 1
vQ, vQx, vS, vSx, vWm, vWx = 0, 1, 2, 3, 4, 5
TP = 20; TPX = 36
def SC(i): return 40 + 16 * (i & 1)
def R(i): return 72 + 36 * (i % NS)
assert R(NS - 1) + 36 <= 256
e("s_mov_b32 s40, 0")
for i in range(1, 8): e(f"s_mov_b32 s{40+i}, {i*QROW}")
e(f"v_lshrrev_b32 v6, 5, v{VL}"); e(f"v_and_b32 v7, 31, v{VL}")
e("s_lshl_b32 s52, s39, 4")
e("v_lshl_add_u32 v8, v6, 3, s52"); e(f"v_mul_u32_u24 v8, {QROW}, v8"); e("v_lshl_add_u32 v8, v7, 4, v8")
e("s_lshl_b32 s50, s55, 2"); e(f"v_add_u32 v{vQ}, s50, v8")
e(f"v_lshrrev_b32 v8, 2, v{VL}"); e("v_add_u32 v8, s52, v8"); e(f"v_mul_u32_u24 v8, {QROW}, v8")
e(f"v_and_b32 v9, 3, v{VL}"); e("v_lshl_add_u32 v8, v9, 4, v8"); e("s_lshl_b32 s50, s54, 2"); e(f"v_add_u32 v{vQx}, s50, v8")
e(f"s_mov_b32 s22, {64*QROW}"); e("s_mov_b32 s23, 0x20000")
e("s_waitcnt lgkmcnt(0)")
el(set_q())
def raw_list(i):
    r = R(i)
    out = [[f"buffer_load_dwordx4 v[{r+4*k}:{r+4*k+3}], v{vQ}, s[20:23], s{40+k} offen {args.qflags}"] for k in range(8)]
    out.append([f"buffer_load_dwordx4 v[{r+32}:{r+35}], v{vQx}, s[20:23], 0 offen {args.qflags}"] + step() + set_q())
    return out
vm = []
def raw_now(i):
    for g in raw_list(i): el(g)
    vm.extend([i] * 9)
raw_now(0); raw_now(1)
if args.icpf == 1:
    e("s_cmp_ge_u32 s2, 8"); e("s_cbranch_scc1 L_noicpf")
    e("s_getpc_b64 s[56:57]"); e("L_pc:")
    e(f"s_sub_u32 s56, s56, L_pc - {NAME}"); e("s_subb_u32 s57, s57, 0")
    e(f"v_lshl_add_u32 v12, s39, 6, v{VL}"); e("v_lshlrev_b32 v12, 7, v12")
    e(f"v_cmp_gt_u32 vcc, L_end - {NAME}, v12"); e("s_and_saveexec_b64 s[58:59], vcc"); e("s_cbranch_execz L_icpf2")
    e("global_load_dword v13, v12, s[56:57]")
    e("L_icpf2:"); e("s_mov_b64 exec, s[58:59]")
    e("L_noicpf:")
e("s_lshl_b32 s52, s39, 12"); e(f"s_add_u32 s52, s52, {WB}"); e(f"v_lshl_add_u32 v{vWm}, v{VL}, 4, s52")
e(f"v_bfe_u32 v8, v{VL}, 4, 1"); e(f"v_and_b32 v10, 15, v{VL}")
e("s_lshl_b32 s52, s39, 9"); e(f"s_add_u32 s52, s52, {WB + XO}")
e(f"v_lshl_add_u32 v{vWx}, v6, 7, s52"); e(f"v_lshl_add_u32 v{vWx}, v8, 8, v{vWx}"); e(f"v_lshl_add_u32 v{vWx}, v10, 3, v{vWx}")
e("s_lshr_b32 s8, s39, 1"); e("s_mul_i32 s52, s8, 576"); e(f"s_add_u32 s52, s52, {TBL}")
e(f"v_lshl_add_u32 v{vS}, v7, 4, s52"); e("s_add_u32 s52, s52, 512"); e(f"v_lshl_add_u32 v{vSx}, v9, 4, s52")
def rd_scales(i):
    c = SC(i); o = i * 1152
    return [f"ds_read_b128 v[{c}:{c+3}], v{vS} offset:{o}", f"ds_read_b128 v[{c+4}:{c+7}], v{vS} offset:{o+TZ}",
            f"ds_read_b128 v[{c+8}:{c+11}], v{vSx} offset:{o}", f"ds_read_b128 v[{c+12}:{c+15}], v{vSx} offset:{o+TZ}"]
if args.pprio: e(f"s_setprio {args.pprio}")
e("s_barrier")
el(rd_scales(0))
e("s_waitcnt lgkmcnt(0)")
nextraw = 2
for i in range(9):
    r = R(i); sc = SC(i); so = (i & 1) * SLOT
    younger = len(vm) - 1 - (len(vm) - 1 - vm[::-1].index(i))
    e(f"s_waitcnt vmcnt({younger})")
    if i in (0, 1, 4, 8): stamp()
    work = []
    for j in range(4):
        work += [f"v_cvt_f32_i32 v{r+4*k+j}, v{r+4*k+j}" for k in range(8)]
        work += [f"v_fma_f32 v{r+4*k+j}, v{r+4*k+j}, v{sc+j}, -v{sc+4+j}" for k in range(8)]
        work += [f"v_cvt_pk_bf16_f32 v{TP+4*j+p}, v{r+8*p+j}, v{r+8*p+4+j}" for p in range(4)]
        work.append(f"ds_write_b128 v{vWm}, v[{TP+4*j}:{TP+4*j+3}] offset:{so + j*1024}")
        if j == 0 and i < 8: work += rd_scales(i + 1)
        if j == 1:
            work += [f"v_cvt_f32_i32 v{r+32+c}, v{r+32+c}" for c in range(4)]
            work += [f"v_fma_f32 v{r+32+c}, v{r+32+c}, v{sc+8+c}, -v{sc+12+c}" for c in range(4)]
            work += [f"v_cvt_pk_bf16_f32 v{TPX+p}, v{r+32+2*p}, v{r+33+2*p}" for p in range(2)]
            work.append(f"ds_write_b64 v{vWx}, v[{TPX}:{TPX+1}] offset:{so}")
    mems = []
    want = PLAN[i]
    assert want - i < NS
    while nextraw <= want:
        mems += raw_list(nextraw); vm.extend([nextraw] * 9); nextraw += 1
    if mems:
        if i == 0: el(work[:args.d0head]); work = work[args.d0head:]
        n = len(mems); per = (len(work) - args.vtail) / n; k = 0
        for idx, g in enumerate(mems):
            el(g)
            k2 = len(work) if idx == n - 1 else int(round(per * (idx + 1)))
            el(work[k:k2]); k = k2
    else: el(work)
    e("s_waitcnt lgkmcnt(0)")
    if i in (0, 1, 4, 8): stamp()
    e("s_barrier")
assert nextraw == 9
stamp_out(12, 13)
e("L_end:")
e("s_endpgm")
e('.section .rodata,"a"'); e(".p2align 6")
e(f".amdhsa_kernel {NAME}")
e("  .amdhsa_next_free_vgpr 256"); e(f"  .amdhsa_next_free_sgpr {102 if args.stamp else 64}"); e("  .amdhsa_accum_offset 256")
e("  .amdhsa_group_segment_fixed_size 0"); e("  .amdhsa_kernarg_size 56")
e("  .amdhsa_user_sgpr_count 2"); e("  .amdhsa_user_sgpr_kernarg_segment_ptr 1"); e("  .amdhsa_system_sgpr_workgroup_id_x 1")
e("  .amdhsa_float_denorm_mode_32 3")
e(".end_amdhsa_kernel")
if args.kill:
    ip = L.index("L_producer:")
    for i, l in enumerate(L):
        c = i < ip; k = args.kill
        if c and "G" in k and re.match(r"ds_read_b128 v\[\d+:\d+\], v[45] ", l): L[i] = "s_nop 0"
        if not c and "W" in k and l.startswith("ds_write"): L[i] = "s_nop 0"
        if not c and "V" in k and re.match(r"v_(cvt|fma)", l): L[i] = "s_nop 0"
        if "D" in k and l.endswith("lds"): L[i] = "s_nop 0"
        if not c and "E" in k and re.match(r"buffer_load_dwordx4 v\[\d+:\d+\], v1, ", l): L[i] = l.replace(", v1, s[20:23], 0 ", ", v0, s[20:23], s47 ")
        if c and "R" in k and l.startswith("ds_read"): L[i] = "s_nop 0"
        if not c and "Q" in k and l.startswith("buffer_load"): L[i] = "s_nop 0"
txt = "\n".join(L) + "\n"
if args.probe >= 0:
    txt = txt.replace(f"; @launch grid=(256,1,1) block=(512,1,1) lds={LDS}", f"; @launch kernel={NAME} grid=(256,1,1) block=(512,1,1) lds={LDS}\n; @launch kernel=spin_kernel grid=(1,1,1) block=(64,1,1) lds=0")
    txt = txt.replace("next_free_sgpr 64", "next_free_sgpr 96")
    txt = txt.replace('.section .rodata,"a"', mkprobe.spin(args.pmult, args.pstat) + '.section .rodata,"a"', 1) + mkprobe.SPINKD
open(args.o, "w").write(txt)
```

```python
import sys, argparse, re
ap = argparse.ArgumentParser()
A = ap.add_argument
A("-o", default="k12.s"); A("--name", default="standalone__weight_only_int_quip_2__prompt_kernel")
A("--stamp", type=int, default=0); A("--store", default="sc1"); A("--xstore", default="")
A("--nostore", type=int, default=0); A("--nomfma", type=int, default=0)
A("--prio", type=int, default=1); A("--pprio", type=int, default=0)
A("--rotg", type=int, default=1); A("--rots", type=int, default=3); A("--rotc", type=int, default=1)
A("--qflags", default=""); A("--aflags", default=""); A("--kill", default="")
A("--la", type=int, default=12); A("--bdelay", type=int, default=4); A("--split", type=int, default=2)
A("--dist", type=int, default=3); A("--vtail", type=int, default=6); A("--icpf", type=int, default=1)
A("--sgap", type=int, default=2); A("--wlazy", type=int, default=5); A("--laa", type=int, default=12); A("--maxa", type=int, default=16); A("--dgap", type=int, default=1); A("--npre", type=int, default=33); A("--gap", type=int, default=24); A("--gaps", type=int, default=8); A("--urg", type=int, default=4); A("--cds", type=int, default=10); A("--cvm", type=int, default=24); A("--map", type=int, default=0); A("--probe", type=int, default=-1); A("--pstat", default="max"); A("--pmult", type=int, default=10); A("--icn", type=int, default=8); A("--morder", type=int, default=0); A("--maxw", type=int, default=3); A("--hdma", type=int, default=1); A("--early", type=int, default=0); A("--plan", default="1,3,4,5,6,7,8,8,8"); A("--d0head", type=int, default=40); A("--la6", type=int, default=12); A("--atail", type=int, default=1)
args = ap.parse_args()

L = []
def e(s): L.append(s)
def el(l):
    for x in l: e(x)
NAME = args.name
QROW = 18432
WB = 98304; HS = 8256; XO = 2 * HS; SLOT = XO + 2048
TBL = WB + 2 * SLOT; TZ = 10368
LDS = TBL + 2 * TZ
def wslot(s): return 2 * SLOT if (s == 8 and args.split == 3) else (s & 1) * SLOT
for l in open("standalone__weight_only_int_quip_2__prompt.s.ref").read().split("\n"):
    if l.startswith("; @launch"): break
    e(l)
e(f"; @launch grid=(256,1,1) block=(512,1,1) lds={LDS}")
e('.amdgcn_target "amdgcn-amd-amdhsa--gfx950"')
e(".text"); e(f".globl {NAME}"); e(".p2align 8"); e(f".type {NAME},@function"); e(f"{NAME}:")

nst = [0]
role = ["c"]
def stamp(lv=1):
    if args.probe >= 0:
        if role[0] == "c" and lv == 1:
            if nst[0] == args.probe: e("s_memrealtime s[88:89]")
            nst[0] += 1
        return
    if args.stamp == lv or (args.stamp == 3 and lv == 1):
        k = 66 + 2 * nst[0]; nst[0] += 1
        assert k <= 98, "too many stamps"
        e(f"s_{'memrealtime' if args.stamp == 3 else 'memtime'} s[{k}:{k+1}]")
def stamp_out(vt, vl):
    if args.stamp:
        e("s_memtime s[62:63]"); e("s_memrealtime s[100:101]"); e("s_waitcnt lgkmcnt(0)")
        e(f"v_mov_b32 v{vt}, 0")
        e(f"v_writelane_b32 v{vt}, s{60 if args.stamp == 3 else 64}, 0"); e(f"v_writelane_b32 v{vt}, s60, 1")
        e(f"v_writelane_b32 v{vt}, s{100 if args.stamp == 3 else 62}, 2"); e(f"v_writelane_b32 v{vt}, s100, 3")
        for i in range(nst[0]): e(f"v_writelane_b32 v{vt}, s{66+2*i}, {4+i}")
        e("s_lshl_b32 s51, s2, 3"); e("s_add_u32 s51, s51, s38"); e("s_lshl_b32 s51, s51, 8")
        e(f"v_mbcnt_lo_u32_b32 v{vl}, -1, 0"); e(f"v_mbcnt_hi_u32_b32 v{vl}, -1, v{vl}"); e(f"v_lshlrev_b32 v{vl}, 2, v{vl}")
        e("s_mov_b32 s4, s14"); e("s_mov_b32 s5, s15"); e("s_mov_b32 s6, 0x1000000"); e("s_mov_b32 s7, 0x20000")
        e(f"buffer_store_dword v{vt}, v{vl}, s[4:7], s51 offen")
def set_x(): return ["s_lshl_b32 s51, s37, 7", "s_add_u32 s16, s4, s51", "s_addc_u32 s17, s5, 0"]
def set_q(): return [f"s_mul_i32 s51, s37, {64*QROW}", "s_add_u32 s20, s6, s51", "s_addc_u32 s21, s7, 0"]
def step(): return ["s_add_u32 s37, s37, 1", "s_cmp_eq_u32 s37, 9", "s_cselect_b32 s37, 0, s37"]

e("s_cmp_ge_u32 s2, 256")
e("s_cbranch_scc1 L_end")
e("s_load_dwordx8 s[4:11], s[0:1], 0")
if args.icpf >= 2:
    e(f"s_cmp_ge_u32 s2, {args.icn}"); e("s_cbranch_scc1 L_noicpf")
    e("s_getpc_b64 s[56:57]"); e("L_pc:")
    e(f"s_sub_u32 s56, s56, L_pc - {NAME}"); e("s_subb_u32 s57, s57, 0")
    e("v_lshlrev_b32 v17, 7, v0")
    e(f"v_cmp_gt_u32 vcc, L_end - {NAME}, v17"); e("s_and_saveexec_b64 s[58:59], vcc"); e("s_cbranch_execz L_icpf2")
    e("global_load_dword v18, v17, s[56:57]")
    e("L_icpf2:"); e("s_mov_b64 exec, s[58:59]")
    e("L_noicpf:")
e("s_load_dwordx2 s[12:13], s[0:1], 32")
if args.probe >= 0:
    e("s_memrealtime s[84:85]"); e("s_load_dwordx2 s[86:87], s[0:1], 48")
if args.stamp:
    e("s_load_dwordx2 s[14:15], s[0:1], 48")
    e("s_memtime s[64:65]"); e("s_memrealtime s[60:61]")
e("v_readfirstlane_b32 s38, v0")
VL = 19
e(f"v_and_b32 v{VL}, 63, v0")
if args.map == 0:
    e("s_lshr_b32 s36, s2, 3"); e("s_and_b32 s36, s36, 7")
    e("s_and_b32 s37, s2, 7"); e("s_mul_i32 s37, s37, 576")
    e("s_lshr_b32 s51, s2, 6")
elif args.map == 2:
    e("s_and_b32 s36, s2, 7"); e("s_lshr_b32 s37, s2, 5"); e("s_mul_i32 s37, s37, 576"); e("s_lshr_b32 s51, s2, 3"); e("s_and_b32 s51, s51, 3")
elif args.map == 3:
    e("s_lshr_b32 s36, s2, 5"); e("s_lshr_b32 s37, s2, 2"); e("s_and_b32 s37, s37, 7"); e("s_lshr_b32 s51, s2, 5"); e("s_add_u32 s37, s37, s51"); e("s_and_b32 s37, s37, 7"); e("s_mul_i32 s37, s37, 576"); e("s_and_b32 s51, s2, 3")
else:
    e("s_lshr_b32 s36, s2, 3"); e("s_and_b32 s36, s36, 3"); e("s_and_b32 s51, s2, 1"); e("s_lshl_b32 s51, s51, 2"); e("s_add_u32 s36, s36, s51")
    e("s_and_b32 s37, s2, 6"); e("s_lshr_b32 s51, s2, 7"); e("s_add_u32 s37, s37, s51"); e("s_mul_i32 s37, s37, 576")
    e("s_lshr_b32 s51, s2, 5"); e("s_and_b32 s51, s51, 3")
e(f"s_mul_i32 s3, s51, {args.rotc}"); e("s_add_u32 s3, s3, s36")
e(f"s_mul_i32 s52, s3, {(65536 + args.rotg - 1)//args.rotg}"); e("s_lshr_b32 s52, s52, 16"); e(f"s_mul_i32 s52, s52, {args.rotg}")
e("s_sub_u32 s3, s3, s52"); e(f"s_mul_i32 s3, s3, {args.rots}")
e("s_lshl_b32 s55, s51, 7"); e("s_add_u32 s55, s55, s37")
e("s_lshl_b32 s54, s51, 4"); e("s_add_u32 s54, s54, s37"); e("s_add_u32 s54, s54, 512")
e("s_lshr_b32 s38, s38, 6")
e("s_and_b32 s39, s38, 3")
e("s_mov_b32 s37, s3")
e("s_cmp_ge_u32 s38, 4")
e("s_cbranch_scc1 L_producer")

FB, GB, vB, vX, vD, vG, vGx = 0, 4, 6, 7, 8, 10, 11
POOL = list(range(12, 112, 4))
ACC = 112
def acc(m, n): return ACC + (m * 8 + n) * 4
def accx(m): return ACC + 128 + 4 * m
for rnd in range(2):
    vg, vo, va = 120 + 4 * rnd, 121 + 4 * rnd, 122 + 4 * rnd
    e(f"v_lshl_add_u32 v{va}, s39, 6, v{VL}")
    if rnd: e(f"v_add_u32 v{va}, 256, v{va}")
    e(f"v_mul_u32_u24 v{vg}, 3641, v{va}"); e(f"v_lshrrev_b32 v{vg}, 16, v{vg}")
    e(f"v_mul_u32_u24 v{vo}, 18, v{vg}"); e(f"v_sub_u32 v{vo}, v{va}, v{vo}")
    e("s_sub_u32 s51, s54, 128")
    e(f"v_mov_b32 v{va}, s51"); e(f"v_mov_b32 v{va+1}, s55")
    e(f"v_cmp_gt_u32 vcc, 16, v{vo}"); e("s_nop 1")
    e(f"v_cndmask_b32 v{va}, v{va}, v{va+1}, vcc")
    e(f"v_lshl_add_u32 v{va}, v{vo}, 3, v{va}")
    e(f"v_mul_u32_u24 v{va+1}, 4608, v{vg}")
    e(f"v_add_lshl_u32 v{va}, v{va}, v{va+1}, 1")
e("s_mov_b32 s26, 165888"); e("s_mov_b32 s27, 0x20000"); e("s_mov_b32 s30, 165888"); e("s_mov_b32 s31, 0x20000")
e("s_mul_i32 s50, s36, 294912")
e("s_waitcnt lgkmcnt(0)")
e("s_mov_b32 s24, s8"); e("s_mov_b32 s25, s9"); e("s_mov_b32 s28, s10"); e("s_mov_b32 s29, s11")

def cost(s):
    if s.startswith("ds_read_b128"): return args.cds
    if s.startswith("ds_read_b64"): return 8
    if s.startswith("buffer_load"): return args.cvm
    if s.startswith("buffer_store"): return 36
    if s.startswith("v_mfma"): return 0
    if s.startswith("v_"): return 5
    return 4
def acost(a):
    c = 0
    for x in a:
        if callable(x): c += getattr(x, "cost", 4)
        else: c += cost(x[1] if isinstance(x, tuple) else x)
    return c
class Sched:
    def __init__(self):
        self.ds = []; self.dsat = []; self.done = 0; self.vm = []; self.vdone = 0; self.slot = 0; self.mf = {}; self.now = 0; self.spent = 0
    def ins(self, s):
        e(s); self.slot += 1; self.spent += cost(s)
    def dsop(self, s, tag):
        if len(self.ds) - self.done >= 15:
            self.ins("s_waitcnt lgkmcnt(10)"); self.done = len(self.ds) - 10
        self.ins(s); self.ds.append(tag); self.dsat.append(self.now)
    def vmop(self, s, tag):
        self.ins(s); self.vm.append(tag)
    def need(self, tags, lazy=True):
        idx = max(len(self.ds) - 1 - self.ds[::-1].index(t) for t in tags)
        if idx >= self.done:
            if lazy:
                while idx + 1 < len(self.ds) and self.now - self.dsat[idx + 1] >= args.wlazy: idx += 1
            self.ins(f"s_waitcnt lgkmcnt({len(self.ds) - 1 - idx})"); self.done = idx + 1
    def needv(self, tag):
        idx = len(self.vm) - 1 - self.vm[::-1].index(tag)
        if idx >= self.vdone:
            self.ins(f"s_waitcnt vmcnt({len(self.vm) - 1 - idx})"); self.vdone = idx + 1
    def mfma(self, d, a, b, zero, big):
        n = 16 if big else 4
        c = "0" if zero else f"v[{d}:{d+n-1}]"
        op = "v_mfma_f32_32x32x16_bf16" if big else "v_mfma_f32_16x16x32_bf16"
        if args.nomfma: self.ins("s_nop 0")
        else: self.ins(f"{op} v[{d}:{d+n-1}], v[{a}:{a+3}], v[{b}:{b+3}], {c}")
        self.mf[d] = (self.slot, 12 if big else 8)
    def valu_reads(self, ds):
        for d in ds:
            at, need = self.mf[d]
            gap = self.slot - at
            if gap < need:
                self.ins(f"s_nop {need - 1 - gap}"); self.slot += need - 1 - gap
    def atom(self, a):
        for x in a:
            if callable(x): x()
            elif isinstance(x, tuple) and x[0] == "ds": self.dsop(x[1], x[2])
            elif isinstance(x, tuple) and x[0] == "vm": self.vmop(x[1], x[2])
            else: self.ins(x)
S = Sched()
for rnd in range(2):
    d = 128 + 8 * rnd
    S.vmop(f"buffer_load_dwordx4 v[{d}:{d+3}], v{122+4*rnd}, s[24:27], 0 offen", "T")
    S.vmop(f"buffer_load_dwordx4 v[{d+4}:{d+7}], v{122+4*rnd}, s[28:31], 0 offen", "T")
e("s_add_u32 s4, s4, s50"); e("s_addc_u32 s5, s5, 0"); e("s_mov_b32 s18, 293888"); e("s_mov_b32 s19, 0x20000")
el(set_x())
e("s_mul_i32 s51, s36, 2359296")
e("s_add_u32 s32, s12, s51"); e("s_addc_u32 s33, s13, 0"); e("s_mov_b32 s34, 2359296"); e("s_mov_b32 s35, 0x20000")
e("s_mul_i32 s53, s39, 24576")
for i in range(1, 8): e(f"s_mov_b32 s{40+i}, {i * 8192 if i < 4 else i * 9216 - (i - 4) * 1024}")
if args.prio: e(f"s_setprio {args.prio}")
e(f"v_lshrrev_b32 v112, 3, v{VL}"); e("s_lshl_b32 s52, s39, 6"); e("v_add_u32 v112, s52, v112"); e("v_mul_u32_u24 v112, 1152, v112")
e(f"v_lshrrev_b32 v113, 4, v{VL}"); e(f"v_and_b32 v{vD}, 7, v{VL}"); e(f"v_xor_b32 v{vD}, v113, v{vD}")
e(f"v_lshl_add_u32 v{vD}, v{vD}, 4, v112"); e(f"v_xor_b32 v{vD+1}, 64, v{vD}")
e(f"v_and_b32 v112, 31, v{VL}"); e(f"v_lshrrev_b32 v113, 5, v{VL}")
e("v_bfe_u32 v114, v112, 1, 3"); e("v_xor_b32 v114, v113, v114"); e("v_lshlrev_b32 v114, 4, v114")
e("v_lshl_add_u32 v114, v112, 7, v114"); e(f"v_add_u32 v{FB}, s53, v114")
for u in range(1, 4): e(f"v_xor_b32 v{FB+u}, {32*u}, v{FB}")
e(f"v_and_b32 v112, 15, v{VL}"); e(f"v_lshrrev_b32 v113, 4, v{VL}")
e("v_lshrrev_b32 v114, 1, v112"); e("v_xor_b32 v114, v113, v114"); e("v_lshlrev_b32 v114, 4, v114"); e("v_lshl_add_u32 v114, v112, 7, v114")
e(f"v_add_u32 v{GB}, s53, v114"); e(f"v_xor_b32 v{GB+1}, 64, v{GB}")
e("v_lshl_add_u32 v114, v113, 2, s52"); e("v_mul_u32_u24 v114, 9216, v114"); e("v_lshl_add_u32 v114, v112, 4, v114")
e("s_lshl_b32 s51, s55, 1"); e(f"v_add_u32 v{vG}, s51, v114")
e(f"v_lshlrev_b32 v{vB}, 4, v{VL}"); e(f"v_add_u32 v{vB}, {WB}, v{vB}")
e("v_add_u32 v114, s52, v112"); e("v_mul_u32_u24 v114, 9216, v114"); e("v_lshl_add_u32 v114, v113, 3, v114")
e("s_lshl_b32 s51, s54, 1"); e(f"v_add_u32 v{vGx}, s51, v114")
e("v_lshrrev_b32 v114, 1, v113"); e("v_and_b32 v115, 1, v113"); e(f"v_lshlrev_b32 v{vX}, 9, v114"); e(f"v_lshl_add_u32 v{vX}, v115, 7, v{vX}")
e(f"v_lshl_add_u32 v{vX}, v112, 3, v{vX}"); e(f"v_add_u32 v{vX}, {WB + XO}, v{vX}")
for rnd in range(2):
    vg, vo, va = 120 + 4 * rnd, 121 + 4 * rnd, 122 + 4 * rnd
    e("s_lshl_b32 s51, s3, 1")
    e(f"v_subrev_u32 v{va}, s51, v{vg}"); e(f"v_add_u32 v{va+1}, 18, v{va}"); e(f"v_min_u32 v{va}, v{va}, v{va+1}")
    e(f"v_mul_u32_u24 v{va}, 576, v{va}"); e(f"v_lshl_add_u32 v{va}, v{vo}, 5, v{va}")
    e(f"v_add_u32 v{va}, {TBL}, v{va}")
def dma_half(s, t, srd="s[16:19]"):
    out = []
    for i in range(4 * t, 4 * t + 4):
        if i % 4 == 0: out.append([f"s_add_u32 m0, s53, {(s % 3) * 8192 + t * 4096}", "s_nop 0"])
        so = "0" if i == 0 else f"s{40+i}"
        out.append([("vm", f"buffer_load_dwordx4 v{vD + (i & 1)}, {srd}, {so} offen offset:{(i & 3)*1024} {args.aflags} lds", ("A", s, t))])
    return out
def dma_atoms(s):
    if args.atail and not args.hdma and args.split == 2 and s == 7:
        return dma_half(7, 0) + [["s_mov_b32 s24, s16", "s_mov_b32 s25, s17", "s_mov_b32 s26, 293888"] + step() + set_x()]
    if args.atail and not args.hdma and args.split == 2 and s == 8:
        return dma_half(8, 0) + dma_half(7, 1, "s[24:27]") + dma_half(8, 1)
    if args.hdma and s >= 3: return dma_half(s, 0) + [step() + set_x()]
    return dma_half(s, 0) + dma_half(s, 1) + [step() + set_x()]
if args.early:
    for a in dma_atoms(0): S.atom(a)
S.needv("T")
for rnd in range(2):
    vg, va = 120 + 4 * rnd, 122 + 4 * rnd
    d = 128 + 8 * rnd
    Sr, Z = 144 + 16 * rnd, 152 + 16 * rnd
    if rnd:
        e(f"v_cmp_gt_u32 vcc, 18, v{vg}"); e("s_and_saveexec_b64 s[56:57], vcc"); e("s_cbranch_execz L_tskip")
    for p in range(4):
        e(f"v_lshlrev_b32 v{Sr+2*p}, 16, v{d+p}"); e(f"v_and_b32 v{Sr+2*p+1}, 0xffff0000, v{d+p}")
        e(f"v_lshlrev_b32 v{Z+2*p}, 16, v{d+4+p}"); e(f"v_and_b32 v{Z+2*p+1}, 0xffff0000, v{d+4+p}")
    for p in range(8): e(f"v_mul_f32 v{Z+p}, v{Z+p}, v{Sr+p}")
    e(f"ds_write_b128 v{va}, v[{Sr}:{Sr+3}]"); e(f"ds_write_b128 v{va}, v[{Sr+4}:{Sr+7}] offset:16")
    e(f"ds_write_b128 v{va}, v[{Z}:{Z+3}] offset:{TZ}"); e(f"ds_write_b128 v{va}, v[{Z+4}:{Z+7}] offset:{TZ+16}")
    if rnd:
        e("L_tskip:"); e("s_mov_b64 exec, s[56:57]")
e("s_waitcnt lgkmcnt(0)")
e("s_barrier")
stamp()
PRE = [x for s in ((1, 2) if args.early else (0, 1, 2)) for x in dma_atoms(s)]
npre = args.npre
for a in PRE[:npre]: S.atom(a)

frs = []
mf = []
def frag(kind, s, base, off, t=None):
    frs.append(dict(kind=kind, s=s, base=base, off=off, t=t, first=None, last=None)); return len(frs) - 1
def section(s, tiles):
    for h in range(2):
        ms = [2 * t + k for t in tiles for k in range(2)]
        G = {m: frag("G", s, GB + h, (s % 3) * 8192 + m * 2048, m // 2) for m in ms}
        z = s == 0 and h == 0
        for n in range(8):
            b = frag("B", s, vB, wslot(s) + h * HS + n * 1024 + (64 if n >= 4 else 0))
            for m in ms: mf.append([acc(m, n), G[m], b, z, False, s])
        xf = frag("X", s, vX, wslot(s) + h * 1024)
        for m in ms: mf.append([accx(m), xf, G[m], z, False, s])
marks = {}
for s in range(9 - args.split):
    marks[len(mf)] = ("stage", s); section(s, (0, 1))
if args.split:
    for t in (0, 1):
        for s in range(9 - args.split, 9):
            marks[len(mf)] = ("half", s, t); section(s, (t,))
for i, m in enumerate(mf):
    for f in (m[1], m[2]):
        if frs[f]["first"] is None: frs[f]["first"] = i
        frs[f]["last"] = i
ordA = sorted([f for f in range(len(frs)) if frs[f]["kind"] in "FG"], key=lambda f: frs[f]["first"])
ordW = sorted([f for f in range(len(frs)) if frs[f]["kind"] in "BX"], key=lambda f: frs[f]["first"])
RES = POOL[-3:]
pool = list(POOL[:-3]); where = {}; nA = [0]; nW = [0]; barred = set(); side = []; heldA = [0]
lasta = {}
for f in ordA: lasta[frs[f]["s"]] = f
issued_at = {}
def emit_read(f, i):
    fr = frs[f]
    r = pool.pop(0); where[f] = r; issued_at[f] = i
    if fr["kind"] == "X":
        S.dsop(f"ds_read_b64_tr_b16 v[{r}:{r+1}], v{fr['base']} offset:{fr['off']}", ("R0", f))
        S.dsop(f"ds_read_b64_tr_b16 v[{r+2}:{r+3}], v{fr['base']} offset:{fr['off']+256}", ("R", f))
    else:
        S.dsop(f"ds_read_b128 v[{r}:{r+3}], v{fr['base']} offset:{fr['off']}", ("R", f))
def try_A(i, force=False):
    if nA[0] >= len(ordA) or not pool: return False
    f = ordA[nA[0]]; fr = frs[f]; s = fr["s"]
    if not force and (fr["first"] - i > args.laa or heldA[0] >= args.maxa): return False
    if args.hdma and s >= 3 and fr["t"] == 1:
        if s not in barred:
            if not force: return False
            while s not in barred: assert try_W(i, True)
    else:
        if ("A", s, fr["t"]) not in S.vm:
            assert not force
            return False
        S.needv(("A", s, fr["t"]))
    emit_read(f, i); nA[0] += 1; heldA[0] += 1
    if f == lasta[s] and s + 3 <= 8:
        side.extend([[], [], [lambda f=f: S.need([("R", f)], lazy=False)]])
        side.extend(x for a in dma_atoms(s + 3) for x in [a] + [[]] * args.dgap)
    return True
def try_W(i, force=False):
    if nW[0] >= len(ordW) or not pool: return False
    f = ordW[nW[0]]; fr = frs[f]; s = fr["s"]
    if not force and fr["first"] - i > (args.la6 if mf[i][5] == 8 - args.split else args.la): return False
    if s not in barred:
        prevw = ordW[nW[0] - 1]
        prevs = [prevw]
        if args.hdma and s - 1 + 3 <= 8:
            if lasta[s - 1] not in issued_at:
                if not force: return False
                while lasta[s - 1] not in issued_at: assert try_A(i, True)
            prevs.append(lasta[s - 1])
        if not force and i - max(issued_at[x] for x in prevs) < args.bdelay and fr["first"] - i > 2: return False
        S.need([("R", x) for x in prevs], lazy=False)
        S.ins("s_barrier"); barred.add(s)
        if s in (1, 4, 6, 8): stamp()
    emit_read(f, i); nW[0] += 1
    return True
def store_atoms(t):
    at = []
    for m in (2 * t, 2 * t + 1):
        for r in range(4):
            def go(m=m, r=r):
                S.valu_reads([acc(m, n) for n in range(8)])
                tmp = TMP[(4 * m + r) % len(TMP)]
                for p in range(4): S.ins(f"v_cvt_pk_bf16_f32 v{tmp+p}, v{acc(m,2*p)+r}, v{acc(m,2*p+1)+r}")
                S.ins(f"s_mov_b32 s52, {(16*m + r) * 9216}")
                if not args.nostore: S.vmop(f"buffer_store_dwordx4 v[{tmp}:{tmp+3}], v{vG}, s[32:35], s52 offen {args.store}", "O")
            go.cost = 60
            at.append([go])
    for m in (2 * t, 2 * t + 1):
        a = accx(m)
        def gx(a=a, m=m):
            S.valu_reads([a])
            S.ins(f"v_cvt_pk_bf16_f32 v{a}, v{a}, v{a+1}"); S.ins(f"v_cvt_pk_bf16_f32 v{a+1}, v{a+2}, v{a+3}")
            S.ins(f"s_mov_b32 s52, {16*m*9216}")
            if not args.nostore: S.vmop(f"buffer_store_dwordx2 v[{a}:{a+1}], v{vGx}, s[32:35], s52 offen {args.xstore}", "O")
        gx.cost = 50
        at.append([gx])
    return at
TMP = []
S.ins("s_barrier"); barred.add(0); stamp()
side.extend(PRE[npre:])
try_A(0); try_W(0); try_A(0); try_W(0); try_W(0); try_A(0); try_W(0); try_W(0)
waited = 0
for i, m in enumerate(mf):
    d, fa, fb, zero, big, s = m
    S.now = i
    if i in marks:
        mk = marks[i]
        if mk[0] == "half" and mk[2] == 1 and s == 9 - args.split:
            stamp()
            assert not side
            TMP.extend(RES)
            side.extend(x for a in store_atoms(0) for x in [a] + [[]] * args.sgap)
    for f in (fa, fb):
        while f not in where:
            assert (try_A if frs[f]["kind"] in "FG" else try_W)(i, True), i
    S.need([("R", fa), ("R", fb)])
    if i in (0, 36): stamp()
    S.mfma(d, where[fa], where[fb], zero, big)
    for f in (fa, fb):
        if frs[f]["last"] == i:
            pool.append(where[f])
            if frs[f]["kind"] in "FG": heldA[0] -= 1
    if not args.gap:
        k = 0
        if try_W(i): k += 1
        if try_A(i): k += 1
        if k < 2: try_W(i)
        if side: S.atom(side.pop(0))
        continue
    budget = (args.gap if big else args.gaps); S.spent = 0
    def urgent(q, n): return n[0] < len(q) and frs[q[n[0]]]["first"] - i <= args.urg
    if side and not side[0]: side.pop(0)
    elif side and not (urgent(ordW, nW) or urgent(ordA, nA)) and (acost(side[0]) <= budget or (waited >= args.maxw)):
        S.atom(side.pop(0)); waited = 0
    elif side: waited += 1
    while True:
        if S.spent + args.cds > budget + 2 and not (S.spent == 0 and (urgent(ordW, nW) or urgent(ordA, nA))): break
        fw = frs[ordW[nW[0]]]["first"] if nW[0] < len(ordW) else 1 << 30
        fa_ = frs[ordA[nA[0]]]["first"] if nA[0] < len(ordA) else 1 << 30
        tries = (try_W, try_A) if fw <= fa_ else (try_A, try_W)
        if not (tries[0](i) or tries[1](i)): break
while side: S.atom(side.pop(0))
stamp()
TMP.extend(pool[:5])
for t in ((1,) if args.split else (0, 1)):
    for a in store_atoms(t): S.atom(a)
stamp()
if args.stamp: e("s_waitcnt vmcnt(0)")
stamp_out(0, 1)
if args.probe >= 0:
    import mkprobe
    if args.probe == 9: e("s_waitcnt vmcnt(0)"); e("s_memrealtime s[88:89]")
    e(mkprobe.outcode(0, 0))
role[0] = "p"
e("s_endpgm")

nst[0] = 0
e(".p2align 6")
e("L_producer:")
PLAN = [int(x) for x in args.plan.split(',')]
NS = max(PLAN[i] - i for i in range(9)) + 1
vQ, vQx, vS, vSx, vWm, vWx = 0, 1, 2, 3, 4, 5
TP = 20; TPX = 36
def SC(i): return 232 if (i == 8 and args.split == 3) else 40 + 16 * (i & 1)
def R(i): return 72 + 36 * (i % NS)
assert R(NS - 1) + 36 <= (232 if args.split == 3 else 256)
e("s_mov_b32 s40, 0")
for i in range(1, 8): e(f"s_mov_b32 s{40+i}, {i*QROW}")
e(f"v_lshrrev_b32 v6, 5, v{VL}"); e(f"v_and_b32 v7, 31, v{VL}")
e("s_lshl_b32 s52, s39, 4")
e("v_lshl_add_u32 v8, v6, 3, s52"); e(f"v_mul_u32_u24 v8, {QROW}, v8"); e("v_lshl_add_u32 v8, v7, 4, v8")
e("s_lshl_b32 s50, s55, 2"); e(f"v_add_u32 v{vQ}, s50, v8")
e(f"v_lshrrev_b32 v8, 2, v{VL}"); e("v_add_u32 v8, s52, v8"); e(f"v_mul_u32_u24 v8, {QROW}, v8")
e(f"v_and_b32 v9, 3, v{VL}"); e("v_lshl_add_u32 v8, v9, 4, v8"); e("s_lshl_b32 s50, s54, 2"); e(f"v_add_u32 v{vQx}, s50, v8")
e(f"s_mov_b32 s22, {64*QROW}"); e("s_mov_b32 s23, 0x20000")
e("s_waitcnt lgkmcnt(0)")
el(set_q())
def raw_list(i):
    r = R(i)
    out = [[f"buffer_load_dwordx4 v[{r+4*k}:{r+4*k+3}], v{vQ}, s[20:23], s{40+k} offen {args.qflags}"] for k in range(8)]
    out.append([f"buffer_load_dwordx4 v[{r+32}:{r+35}], v{vQx}, s[20:23], 0 offen {args.qflags}"] + step() + set_q())
    return out
vm = []
def raw_now(i):
    for g in raw_list(i): el(g)
    vm.extend([i] * 9)
raw_now(0); raw_now(1)
if args.icpf == 1:
    e("s_cmp_ge_u32 s2, 8"); e("s_cbranch_scc1 L_noicpf")
    e("s_getpc_b64 s[56:57]"); e("L_pc:")
    e(f"s_sub_u32 s56, s56, L_pc - {NAME}"); e("s_subb_u32 s57, s57, 0")
    e(f"v_lshl_add_u32 v12, s39, 6, v{VL}"); e("v_lshlrev_b32 v12, 7, v12")
    e(f"v_cmp_gt_u32 vcc, L_end - {NAME}, v12"); e("s_and_saveexec_b64 s[58:59], vcc"); e("s_cbranch_execz L_icpf2")
    e("global_load_dword v13, v12, s[56:57]")
    e("L_icpf2:"); e("s_mov_b64 exec, s[58:59]")
    e("L_noicpf:")
e("s_lshr_b32 s52, s39, 1"); e(f"s_mul_i32 s52, s52, {HS}"); e("s_and_b32 s53, s39, 1"); e("s_lshl_b32 s53, s53, 9"); e("s_add_u32 s52, s52, s53"); e(f"s_add_u32 s52, s52, {WB}")
e(f"v_lshl_add_u32 v{vWm}, v6, 8, s52"); e("v_and_b32 v8, 1, v7"); e(f"v_mul_u32_u24 v8, 4160, v8"); e(f"v_add_u32 v{vWm}, v{vWm}, v8")
e("v_lshrrev_b32 v8, 1, v7"); e(f"v_lshl_add_u32 v{vWm}, v8, 4, v{vWm}")
e(f"v_bfe_u32 v8, v{VL}, 4, 1"); e(f"v_and_b32 v10, 15, v{VL}")
e("s_lshl_b32 s52, s39, 9"); e(f"s_add_u32 s52, s52, {WB + XO}")
e(f"v_lshl_add_u32 v{vWx}, v6, 7, s52"); e(f"v_lshl_add_u32 v{vWx}, v8, 8, v{vWx}"); e(f"v_lshl_add_u32 v{vWx}, v10, 3, v{vWx}")
e("s_lshr_b32 s8, s39, 1"); e("s_mul_i32 s52, s8, 576"); e(f"s_add_u32 s52, s52, {TBL}")
e(f"v_lshl_add_u32 v{vS}, v7, 4, s52"); e("s_add_u32 s52, s52, 512"); e(f"v_lshl_add_u32 v{vSx}, v9, 4, s52")
def rd_scales(i):
    c = SC(i); o = i * 1152
    return [f"ds_read_b128 v[{c}:{c+3}], v{vS} offset:{o}", f"ds_read_b128 v[{c+4}:{c+7}], v{vS} offset:{o+TZ}",
            f"ds_read_b128 v[{c+8}:{c+11}], v{vSx} offset:{o}", f"ds_read_b128 v[{c+12}:{c+15}], v{vSx} offset:{o+TZ}"]
vD = 10
if args.hdma:
    e("s_mul_i32 s52, s36, 294912"); e("s_add_u32 s4, s4, s52"); e("s_addc_u32 s5, s5, 0"); e("s_mov_b32 s18, 293888"); e("s_mov_b32 s19, 0x20000")
    e(f"v_lshrrev_b32 v8, 3, v{VL}"); e("s_lshl_b32 s52, s39, 6"); e("s_add_u32 s52, s52, 32"); e("v_add_u32 v8, s52, v8"); e("v_mul_u32_u24 v8, 1152, v8")
    e(f"v_lshrrev_b32 v9, 4, v{VL}"); e(f"v_and_b32 v{vD}, 7, v{VL}"); e(f"v_xor_b32 v{vD}, v9, v{vD}")
    e(f"v_lshl_add_u32 v{vD}, v{vD}, 4, v8"); e(f"v_xor_b32 v{vD+1}, 64, v{vD}")
    e("s_mul_i32 s36, s39, 24576"); e("s_add_u32 s36, s36, 4096")
    for i in range(1, 4): e(f"s_mov_b32 s{56+i}, {i*8192}")
def hdma(p):
    out = [[f"s_add_u32 s53, s3, {p}", "s_cmp_ge_u32 s53, 9", "s_cselect_b32 s51, 9, 0", "s_sub_u32 s53, s53, s51", "s_lshl_b32 s51, s53, 7",
            "s_add_u32 s16, s4, s51", "s_addc_u32 s17, s5, 0", f"s_add_u32 m0, s36, {(p % 3) * 8192}", "s_nop 0"]]
    for i in range(4):
        g = [f"buffer_load_dwordx4 v{vD + (i & 1)}, s[16:19], {'0' if i == 0 else f's{56+i}'} offen offset:{i*1024} {args.aflags} lds"]
        if i == 0: out[0] += g
        else: out.append(g)
    return out
if args.pprio: e(f"s_setprio {args.pprio}")
e("s_barrier")
el(rd_scales(0))
e("s_waitcnt lgkmcnt(0)")
nextraw = 2
for i in range(9):
    r = R(i); sc = SC(i); so = wslot(i)
    younger = len(vm) - 1 - (len(vm) - 1 - vm[::-1].index(i))
    e(f"s_waitcnt vmcnt({younger})")
    if i in (0, 1, 4, 8): stamp()
    work = []
    for j in range(4):
        work += [f"v_cvt_f32_i32 v{r+4*k+j}, v{r+4*k+j}" for k in range(8)]
        work += [f"v_fma_f32 v{r+4*k+j}, v{r+4*k+j}, v{sc+j}, -v{sc+4+j}" for k in range(8)]
        work += [f"v_cvt_pk_bf16_f32 v{TP+4*j+p}, v{r+8*p+j}, v{r+8*p+4+j}" for p in range(4)]
        work.append(f"ds_write_b128 v{vWm}, v[{TP+4*j}:{TP+4*j+3}] offset:{so + j*1024}")
        if j == 0 and i < (7 if args.split == 3 else 8): work += rd_scales(i + 1)
        if j == 2 and i == 6 and args.split == 3: work += rd_scales(8)
        if j == 1:
            work += [f"v_cvt_f32_i32 v{r+32+c}, v{r+32+c}" for c in range(4)]
            work += [f"v_fma_f32 v{r+32+c}, v{r+32+c}, v{sc+8+c}, -v{sc+12+c}" for c in range(4)]
            work += [f"v_cvt_pk_bf16_f32 v{TPX+p}, v{r+32+2*p}, v{r+33+2*p}" for p in range(2)]
            work.append(f"ds_write_b64 v{vWx}, v[{TPX}:{TPX+1}] offset:{so}")
    mems = []
    if args.hdma and 2 <= i <= 7:
        mems += hdma(i + 1); vm.extend([("A", i + 1)] * 4)
    want = PLAN[i]
    assert want - i < NS
    while nextraw <= want:
        mems += raw_list(nextraw); vm.extend([nextraw] * 9); nextraw += 1
    if mems:
        if i == 0: el(work[:args.d0head]); work = work[args.d0head:]
        n = len(mems); per = (len(work) - args.vtail) / n; k = 0
        for idx, g in enumerate(mems):
            el(g)
            k2 = len(work) if idx == n - 1 else int(round(per * (idx + 1)))
            el(work[k:k2]); k = k2
    else: el(work)
    if args.hdma and i >= 3: e(f"s_waitcnt vmcnt({vm[::-1].index(('A', i))})")
    e("s_waitcnt lgkmcnt(0)")
    if i in (0, 1, 4, 8): stamp()
    e("s_barrier")
assert nextraw == 9
stamp_out(12, 13)
e("L_end:")
e("s_endpgm")
e('.section .rodata,"a"'); e(".p2align 6")
e(f".amdhsa_kernel {NAME}")
e("  .amdhsa_next_free_vgpr 256"); e(f"  .amdhsa_next_free_sgpr {102 if args.stamp else 64}"); e("  .amdhsa_accum_offset 256")
e("  .amdhsa_group_segment_fixed_size 0"); e("  .amdhsa_kernarg_size 56")
e("  .amdhsa_user_sgpr_count 2"); e("  .amdhsa_user_sgpr_kernarg_segment_ptr 1"); e("  .amdhsa_system_sgpr_workgroup_id_x 1")
e("  .amdhsa_float_denorm_mode_32 3")
e(".end_amdhsa_kernel")
if args.kill:
    ip = L.index("L_producer:")
    for i, l in enumerate(L):
        c = i < ip; k = args.kill
        if c and "G" in k and re.match(r"ds_read_b128 v\[\d+:\d+\], v[45] ", l): L[i] = "s_nop 0"
        if not c and "W" in k and l.startswith("ds_write"): L[i] = "s_nop 0"
        if not c and "V" in k and re.match(r"v_(cvt|fma)", l): L[i] = "s_nop 0"
        if "D" in k and l.endswith("lds"): L[i] = "s_nop 0"
        if not c and "E" in k and re.match(r"buffer_load_dwordx4 v\[\d+:\d+\], v1, ", l): L[i] = l.replace(", v1, s[20:23], 0 ", ", v0, s[20:23], s47 ")
        if c and "R" in k and l.startswith("ds_read"): L[i] = "s_nop 0"
        if not c and "Q" in k and l.startswith("buffer_load"): L[i] = "s_nop 0"
txt = "\n".join(L) + "\n"
if args.probe >= 0:
    txt = txt.replace(f"; @launch grid=(256,1,1) block=(512,1,1) lds={LDS}", f"; @launch kernel={NAME} grid=(256,1,1) block=(512,1,1) lds={LDS}\n; @launch kernel=spin_kernel grid=(1,1,1) block=(64,1,1) lds=0")
    txt = txt.replace("next_free_sgpr 64", "next_free_sgpr 96")
    txt = txt.replace('.section .rodata,"a"', mkprobe.spin(args.pmult, args.pstat) + '.section .rodata,"a"', 1) + mkprobe.SPINKD
open(args.o, "w").write(txt)
```

```python
import sys, argparse, re
ap = argparse.ArgumentParser()
A = ap.add_argument
A("-o", default="k12.s"); A("--name", default="standalone__weight_only_int_quip_2__prompt_kernel")
A("--stamp", type=int, default=0); A("--store", default="sc1"); A("--xstore", default="")
A("--nostore", type=int, default=0); A("--nomfma", type=int, default=0)
A("--prio", type=int, default=1); A("--pprio", type=int, default=0)
A("--rotg", type=int, default=1); A("--rots", type=int, default=3); A("--rotc", type=int, default=1)
A("--qflags", default=""); A("--aflags", default=""); A("--kill", default="")
A("--la", type=int, default=12); A("--bdelay", type=int, default=4); A("--split", type=int, default=2)
A("--dist", type=int, default=3); A("--vtail", type=int, default=6); A("--icpf", type=int, default=1)
A("--sgap", type=int, default=2); A("--wlazy", type=int, default=5); A("--laa", type=int, default=12); A("--maxa", type=int, default=16); A("--dgap", type=int, default=1); A("--npre", type=int, default=33); A("--gap", type=int, default=24); A("--gaps", type=int, default=8); A("--urg", type=int, default=4); A("--cds", type=int, default=10); A("--cvm", type=int, default=24); A("--map", type=int, default=0); A("--probe", type=int, default=-1); A("--pstat", default="max"); A("--pmult", type=int, default=10); A("--icn", type=int, default=8); A("--morder", type=int, default=0); A("--maxw", type=int, default=3); A("--hdma", type=int, default=1); A("--l2pf", type=int, default=0); A("--l2at", type=int, default=11); A("--swap", type=int, default=0); A("--early", type=int, default=0); A("--plan", default="1,3,4,5,6,7,8,8,8"); A("--d0head", type=int, default=40); A("--la6", type=int, default=12); A("--atail", type=int, default=1)
args = ap.parse_args()

L = []
def e(s): L.append(s)
def el(l):
    for x in l: e(x)
NAME = args.name
QROW = 18432
WB = 98304; HS = 8256; XO = 2 * HS; SLOT = XO + 2048
TBL = WB + 2 * SLOT; TZ = 10368
LDS = TBL + 2 * TZ
def wslot(s): return 2 * SLOT if (s == 8 and args.split == 3) else (s & 1) * SLOT
for l in open("standalone__weight_only_int_quip_2__prompt.s.ref").read().split("\n"):
    if l.startswith("; @launch"): break
    e(l)
e(f"; @launch grid=(256,1,1) block=(512,1,1) lds={LDS}")
e('.amdgcn_target "amdgcn-amd-amdhsa--gfx950"')
e(".text"); e(f".globl {NAME}"); e(".p2align 8"); e(f".type {NAME},@function"); e(f"{NAME}:")

nst = [0]
role = ["c"]
def stamp(lv=1):
    if args.probe >= 0:
        if role[0] == "c" and lv == 1:
            if nst[0] == args.probe: e("s_memrealtime s[88:89]")
            nst[0] += 1
        return
    if args.stamp == lv or (args.stamp == 3 and lv == 1):
        k = 66 + 2 * nst[0]; nst[0] += 1
        assert k <= 98, "too many stamps"
        e(f"s_{'memrealtime' if args.stamp == 3 else 'memtime'} s[{k}:{k+1}]")
def stamp_out(vt, vl):
    if args.stamp:
        e("s_memtime s[62:63]"); e("s_memrealtime s[100:101]"); e("s_waitcnt lgkmcnt(0)")
        e(f"v_mov_b32 v{vt}, 0")
        e(f"v_writelane_b32 v{vt}, s{60 if args.stamp == 3 else 64}, 0"); e(f"v_writelane_b32 v{vt}, s60, 1")
        e(f"v_writelane_b32 v{vt}, s{100 if args.stamp == 3 else 62}, 2"); e(f"v_writelane_b32 v{vt}, s100, 3")
        for i in range(nst[0]): e(f"v_writelane_b32 v{vt}, s{66+2*i}, {4+i}")
        e("s_lshl_b32 s51, s2, 3"); e("s_add_u32 s51, s51, s38"); e("s_lshl_b32 s51, s51, 8")
        e(f"v_mbcnt_lo_u32_b32 v{vl}, -1, 0"); e(f"v_mbcnt_hi_u32_b32 v{vl}, -1, v{vl}"); e(f"v_lshlrev_b32 v{vl}, 2, v{vl}")
        e("s_mov_b32 s4, s14"); e("s_mov_b32 s5, s15"); e("s_mov_b32 s6, 0x1000000"); e("s_mov_b32 s7, 0x20000")
        e(f"buffer_store_dword v{vt}, v{vl}, s[4:7], s51 offen")
def set_x(): return ["s_lshl_b32 s51, s37, 7", "s_add_u32 s16, s4, s51", "s_addc_u32 s17, s5, 0"]
def set_q(): return [f"s_mul_i32 s51, s37, {64*QROW}", "s_add_u32 s20, s6, s51", "s_addc_u32 s21, s7, 0"]
def step(): return ["s_add_u32 s37, s37, 1", "s_cmp_eq_u32 s37, 9", "s_cselect_b32 s37, 0, s37"]

e("s_cmp_ge_u32 s2, 256")
e("s_cbranch_scc1 L_end")
e("s_load_dwordx8 s[4:11], s[0:1], 0")
if args.icpf >= 2:
    e(f"s_cmp_ge_u32 s2, {args.icn}"); e("s_cbranch_scc1 L_noicpf")
    e("s_getpc_b64 s[56:57]"); e("L_pc:")
    e(f"s_sub_u32 s56, s56, L_pc - {NAME}"); e("s_subb_u32 s57, s57, 0")
    e("v_lshlrev_b32 v17, 7, v0")
    e(f"v_cmp_gt_u32 vcc, L_end - {NAME}, v17"); e("s_and_saveexec_b64 s[58:59], vcc"); e("s_cbranch_execz L_icpf2")
    e("global_load_dword v18, v17, s[56:57]")
    e("L_icpf2:"); e("s_mov_b64 exec, s[58:59]")
    e("L_noicpf:")
e("s_load_dwordx2 s[12:13], s[0:1], 32")
if args.probe >= 0:
    e("s_memrealtime s[84:85]"); e("s_load_dwordx2 s[86:87], s[0:1], 48")
if args.stamp:
    e("s_load_dwordx2 s[14:15], s[0:1], 48")
    e("s_memtime s[64:65]"); e("s_memrealtime s[60:61]")
e("v_readfirstlane_b32 s38, v0")
VL = 19
e(f"v_and_b32 v{VL}, 63, v0")
if args.map == 0:
    e("s_lshr_b32 s36, s2, 3"); e("s_and_b32 s36, s36, 7")
    e("s_and_b32 s37, s2, 7"); e("s_mul_i32 s37, s37, 576")
    e("s_lshr_b32 s51, s2, 6")
elif args.map == 2:
    e("s_and_b32 s36, s2, 7"); e("s_lshr_b32 s37, s2, 5"); e("s_mul_i32 s37, s37, 576"); e("s_lshr_b32 s51, s2, 3"); e("s_and_b32 s51, s51, 3")
elif args.map == 3:
    e("s_lshr_b32 s36, s2, 5"); e("s_lshr_b32 s37, s2, 2"); e("s_and_b32 s37, s37, 7"); e("s_lshr_b32 s51, s2, 5"); e("s_add_u32 s37, s37, s51"); e("s_and_b32 s37, s37, 7"); e("s_mul_i32 s37, s37, 576"); e("s_and_b32 s51, s2, 3")
else:
    e("s_lshr_b32 s36, s2, 3"); e("s_and_b32 s36, s36, 3"); e("s_and_b32 s51, s2, 1"); e("s_lshl_b32 s51, s51, 2"); e("s_add_u32 s36, s36, s51")
    e("s_and_b32 s37, s2, 6"); e("s_lshr_b32 s51, s2, 7"); e("s_add_u32 s37, s37, s51"); e("s_mul_i32 s37, s37, 576")
    e("s_lshr_b32 s51, s2, 5"); e("s_and_b32 s51, s51, 3")
e(f"s_mul_i32 s3, s51, {args.rotc}"); e("s_add_u32 s3, s3, s36")
e(f"s_mul_i32 s52, s3, {(65536 + args.rotg - 1)//args.rotg}"); e("s_lshr_b32 s52, s52, 16"); e(f"s_mul_i32 s52, s52, {args.rotg}")
e("s_sub_u32 s3, s3, s52"); e(f"s_mul_i32 s3, s3, {args.rots}")
e("s_lshl_b32 s55, s51, 7"); e("s_add_u32 s55, s55, s37")
e("s_lshl_b32 s54, s51, 4"); e("s_add_u32 s54, s54, s37"); e("s_add_u32 s54, s54, 512")
e("s_lshr_b32 s38, s38, 6")
e("s_and_b32 s39, s38, 3")
e("s_mov_b32 s37, s3")
e("s_cmp_lt_u32 s38, 4" if args.swap else "s_cmp_ge_u32 s38, 4")
e("s_cbranch_scc1 L_producer")

FB, GB, vB, vX, vD, vG, vGx = 0, 4, 6, 7, 8, 10, 11
POOL = list(range(12, 112, 4))
ACC = 112
def acc(m, n): return ACC + (m * 8 + n) * 4
def accx(m): return ACC + 128 + 4 * m
for rnd in range(2):
    vg, vo, va = 120 + 4 * rnd, 121 + 4 * rnd, 122 + 4 * rnd
    e(f"v_lshl_add_u32 v{va}, s39, 6, v{VL}")
    if rnd: e(f"v_add_u32 v{va}, 256, v{va}")
    e(f"v_mul_u32_u24 v{vg}, 3641, v{va}"); e(f"v_lshrrev_b32 v{vg}, 16, v{vg}")
    e(f"v_mul_u32_u24 v{vo}, 18, v{vg}"); e(f"v_sub_u32 v{vo}, v{va}, v{vo}")
    e("s_sub_u32 s51, s54, 128")
    e(f"v_mov_b32 v{va}, s51"); e(f"v_mov_b32 v{va+1}, s55")
    e(f"v_cmp_gt_u32 vcc, 16, v{vo}"); e("s_nop 1")
    e(f"v_cndmask_b32 v{va}, v{va}, v{va+1}, vcc")
    e(f"v_lshl_add_u32 v{va}, v{vo}, 3, v{va}")
    e(f"v_mul_u32_u24 v{va+1}, 4608, v{vg}")
    e(f"v_add_lshl_u32 v{va}, v{va}, v{va+1}, 1")
e("s_mov_b32 s26, 165888"); e("s_mov_b32 s27, 0x20000"); e("s_mov_b32 s30, 165888"); e("s_mov_b32 s31, 0x20000")
e("s_mul_i32 s50, s36, 294912")
e("s_waitcnt lgkmcnt(0)")
e("s_mov_b32 s24, s8"); e("s_mov_b32 s25, s9"); e("s_mov_b32 s28, s10"); e("s_mov_b32 s29, s11")

def cost(s):
    if s.startswith("ds_read_b128"): return args.cds
    if s.startswith("ds_read_b64"): return 8
    if s.startswith("buffer_load"): return args.cvm
    if s.startswith("buffer_store"): return 36
    if s.startswith("v_mfma"): return 0
    if s.startswith("v_"): return 5
    return 4
def acost(a):
    c = 0
    for x in a:
        if callable(x): c += getattr(x, "cost", 4)
        else: c += cost(x[1] if isinstance(x, tuple) else x)
    return c
class Sched:
    def __init__(self):
        self.ds = []; self.dsat = []; self.done = 0; self.vm = []; self.vdone = 0; self.slot = 0; self.mf = {}; self.now = 0; self.spent = 0
    def ins(self, s):
        e(s); self.slot += 1; self.spent += cost(s)
    def dsop(self, s, tag):
        if len(self.ds) - self.done >= 15:
            self.ins("s_waitcnt lgkmcnt(10)"); self.done = len(self.ds) - 10
        self.ins(s); self.ds.append(tag); self.dsat.append(self.now)
    def vmop(self, s, tag):
        self.ins(s); self.vm.append(tag)
    def need(self, tags, lazy=True):
        idx = max(len(self.ds) - 1 - self.ds[::-1].index(t) for t in tags)
        if idx >= self.done:
            if lazy:
                while idx + 1 < len(self.ds) and self.now - self.dsat[idx + 1] >= args.wlazy: idx += 1
            self.ins(f"s_waitcnt lgkmcnt({len(self.ds) - 1 - idx})"); self.done = idx + 1
    def needv(self, tag):
        idx = len(self.vm) - 1 - self.vm[::-1].index(tag)
        if idx >= self.vdone:
            self.ins(f"s_waitcnt vmcnt({len(self.vm) - 1 - idx})"); self.vdone = idx + 1
    def mfma(self, d, a, b, zero, big):
        n = 16 if big else 4
        c = "0" if zero else f"v[{d}:{d+n-1}]"
        op = "v_mfma_f32_32x32x16_bf16" if big else "v_mfma_f32_16x16x32_bf16"
        if args.nomfma: self.ins("s_nop 0")
        else: self.ins(f"{op} v[{d}:{d+n-1}], v[{a}:{a+3}], v[{b}:{b+3}], {c}")
        self.mf[d] = (self.slot, 12 if big else 8)
    def valu_reads(self, ds):
        for d in ds:
            at, need = self.mf[d]
            gap = self.slot - at
            if gap < need:
                self.ins(f"s_nop {need - 1 - gap}"); self.slot += need - 1 - gap
    def atom(self, a):
        for x in a:
            if callable(x): x()
            elif isinstance(x, tuple) and x[0] == "ds": self.dsop(x[1], x[2])
            elif isinstance(x, tuple) and x[0] == "vm": self.vmop(x[1], x[2])
            else: self.ins(x)
S = Sched()
for rnd in range(2):
    d = 128 + 8 * rnd
    S.vmop(f"buffer_load_dwordx4 v[{d}:{d+3}], v{122+4*rnd}, s[24:27], 0 offen", "T")
    S.vmop(f"buffer_load_dwordx4 v[{d+4}:{d+7}], v{122+4*rnd}, s[28:31], 0 offen", "T")
e("s_add_u32 s4, s4, s50"); e("s_addc_u32 s5, s5, 0"); e("s_mov_b32 s18, 293888"); e("s_mov_b32 s19, 0x20000")
el(set_x())
e("s_mul_i32 s51, s36, 2359296")
e("s_add_u32 s32, s12, s51"); e("s_addc_u32 s33, s13, 0"); e("s_mov_b32 s34, 2359296"); e("s_mov_b32 s35, 0x20000")
e("s_mul_i32 s53, s39, 24576")
for i in range(1, 8): e(f"s_mov_b32 s{40+i}, {i * 8192 if i < 4 else i * 9216 - (i - 4) * 1024}")
if args.prio: e(f"s_setprio {args.prio}")
e(f"v_lshrrev_b32 v112, 3, v{VL}"); e("s_lshl_b32 s52, s39, 6"); e("v_add_u32 v112, s52, v112"); e("v_mul_u32_u24 v112, 1152, v112")
e(f"v_lshrrev_b32 v113, 4, v{VL}"); e(f"v_and_b32 v{vD}, 7, v{VL}"); e(f"v_xor_b32 v{vD}, v113, v{vD}")
e(f"v_lshl_add_u32 v{vD}, v{vD}, 4, v112"); e(f"v_xor_b32 v{vD+1}, 64, v{vD}")
e(f"v_and_b32 v112, 31, v{VL}"); e(f"v_lshrrev_b32 v113, 5, v{VL}")
e("v_bfe_u32 v114, v112, 1, 3"); e("v_xor_b32 v114, v113, v114"); e("v_lshlrev_b32 v114, 4, v114")
e("v_lshl_add_u32 v114, v112, 7, v114"); e(f"v_add_u32 v{FB}, s53, v114")
for u in range(1, 4): e(f"v_xor_b32 v{FB+u}, {32*u}, v{FB}")
e(f"v_and_b32 v112, 15, v{VL}"); e(f"v_lshrrev_b32 v113, 4, v{VL}")
e("v_lshrrev_b32 v114, 1, v112"); e("v_xor_b32 v114, v113, v114"); e("v_lshlrev_b32 v114, 4, v114"); e("v_lshl_add_u32 v114, v112, 7, v114")
e(f"v_add_u32 v{GB}, s53, v114"); e(f"v_xor_b32 v{GB+1}, 64, v{GB}")
e("v_lshl_add_u32 v114, v113, 2, s52"); e("v_mul_u32_u24 v114, 9216, v114"); e("v_lshl_add_u32 v114, v112, 4, v114")
e("s_lshl_b32 s51, s55, 1"); e(f"v_add_u32 v{vG}, s51, v114")
e(f"v_lshlrev_b32 v{vB}, 4, v{VL}"); e(f"v_add_u32 v{vB}, {WB}, v{vB}")
e("v_add_u32 v114, s52, v112"); e("v_mul_u32_u24 v114, 9216, v114"); e("v_lshl_add_u32 v114, v113, 3, v114")
e("s_lshl_b32 s51, s54, 1"); e(f"v_add_u32 v{vGx}, s51, v114")
e("v_lshrrev_b32 v114, 1, v113"); e("v_and_b32 v115, 1, v113"); e(f"v_lshlrev_b32 v{vX}, 9, v114"); e(f"v_lshl_add_u32 v{vX}, v115, 7, v{vX}")
e(f"v_lshl_add_u32 v{vX}, v112, 3, v{vX}"); e(f"v_add_u32 v{vX}, {WB + XO}, v{vX}")
for rnd in range(2):
    vg, vo, va = 120 + 4 * rnd, 121 + 4 * rnd, 122 + 4 * rnd
    e("s_lshl_b32 s51, s3, 1")
    e(f"v_subrev_u32 v{va}, s51, v{vg}"); e(f"v_add_u32 v{va+1}, 18, v{va}"); e(f"v_min_u32 v{va}, v{va}, v{va+1}")
    e(f"v_mul_u32_u24 v{va}, 576, v{va}"); e(f"v_lshl_add_u32 v{va}, v{vo}, 5, v{va}")
    e(f"v_add_u32 v{va}, {TBL}, v{va}")
def dma_half(s, t, srd="s[16:19]"):
    out = []
    for i in range(4 * t, 4 * t + 4):
        if i % 4 == 0: out.append([f"s_add_u32 m0, s53, {(s % 3) * 8192 + t * 4096}", "s_nop 0"])
        so = "0" if i == 0 else f"s{40+i}"
        out.append([("vm", f"buffer_load_dwordx4 v{vD + (i & 1)}, {srd}, {so} offen offset:{(i & 3)*1024} {args.aflags} lds", ("A", s, t))])
    return out
def dma_atoms(s):
    if args.atail and not args.hdma and args.split == 2 and s == 7:
        return dma_half(7, 0) + [["s_mov_b32 s24, s16", "s_mov_b32 s25, s17", "s_mov_b32 s26, 293888"] + step() + set_x()]
    if args.atail and not args.hdma and args.split == 2 and s == 8:
        return dma_half(8, 0) + dma_half(7, 1, "s[24:27]") + dma_half(8, 1)
    if args.hdma and s >= 3: return dma_half(s, 0) + [step() + set_x()]
    return dma_half(s, 0) + dma_half(s, 1) + [step() + set_x()]
if args.early:
    for a in dma_atoms(0): S.atom(a)
S.needv("T")
for rnd in range(2):
    vg, va = 120 + 4 * rnd, 122 + 4 * rnd
    d = 128 + 8 * rnd
    Sr, Z = 144 + 16 * rnd, 152 + 16 * rnd
    if rnd:
        e(f"v_cmp_gt_u32 vcc, 18, v{vg}"); e("s_and_saveexec_b64 s[56:57], vcc"); e("s_cbranch_execz L_tskip")
    for p in range(4):
        e(f"v_lshlrev_b32 v{Sr+2*p}, 16, v{d+p}"); e(f"v_and_b32 v{Sr+2*p+1}, 0xffff0000, v{d+p}")
        e(f"v_lshlrev_b32 v{Z+2*p}, 16, v{d+4+p}"); e(f"v_and_b32 v{Z+2*p+1}, 0xffff0000, v{d+4+p}")
    for p in range(8): e(f"v_mul_f32 v{Z+p}, v{Z+p}, v{Sr+p}")
    e(f"ds_write_b128 v{va}, v[{Sr}:{Sr+3}]"); e(f"ds_write_b128 v{va}, v[{Sr+4}:{Sr+7}] offset:16")
    e(f"ds_write_b128 v{va}, v[{Z}:{Z+3}] offset:{TZ}"); e(f"ds_write_b128 v{va}, v[{Z+4}:{Z+7}] offset:{TZ+16}")
    if rnd:
        e("L_tskip:"); e("s_mov_b64 exec, s[56:57]")
e("s_waitcnt lgkmcnt(0)")
e("s_barrier")
stamp()
PRE = [x for s in ((1, 2) if args.early else (0, 1, 2)) for x in dma_atoms(s)]
npre = args.npre
def l2pf():
    e("s_mov_b32 s20, s6"); e("s_mov_b32 s21, s7"); e("s_mov_b32 s22, 10616832"); e("s_mov_b32 s23, 0x20000")
    e(f"v_lshl_add_u32 v112, s39, 6, v{VL}"); e("v_min_u32 v112, 251, v112")
    e("v_mul_u32_u24 v113, 3641, v112"); e("v_lshrrev_b32 v113, 16, v113"); e("v_mul_u32_u24 v114, 18, v113"); e("v_sub_u32 v114, v112, v114")
    e("s_lshr_b32 s51, s2, 3"); e("s_mul_i32 s51, s51, 14"); e("s_lshl_b32 s52, s3, 6"); e("s_add_u32 s51, s51, s52"); e("s_add_u32 s51, s51, 128")
    e("v_add_u32 v113, s51, v113"); e("v_subrev_u32 v115, 576, v113"); e("v_min_u32 v113, v113, v115")
    e(f"v_mul_u32_u24 v113, {QROW}, v113"); e("v_lshl_add_u32 v113, v114, 7, v113")
    e("s_and_b32 s51, s2, 7"); e("s_mul_i32 s51, s51, 2304")
    S.vmop("buffer_load_dword v16, v113, s[20:23], s51 offen", "PF")
    if args.l2pf >= 2:
        e("s_lshl_b32 s51, s2, 2"); e("s_add_u32 s51, s51, s39"); e("s_lshl_b32 s51, s51, 1")
        e(f"v_min_u32 v112, 13, v{VL}"); e("v_cmp_lt_u32 vcc, 6, v112"); e("v_subrev_u32 v113, 7, v112"); e("s_nop 0"); e("v_cndmask_b32 v113, v112, v113, vcc")
        e("v_cndmask_b32 v114, 0, 1, vcc"); e("v_add_u32 v114, s51, v114"); e("v_mul_u32_u24 v114, 1152, v114"); e("v_add_u32 v113, 2, v113"); e("v_lshl_add_u32 v113, v113, 7, v114")
        e("s_mul_i32 s52, s36, 294912"); e("s_sub_u32 s20, s4, s52"); e("s_subb_u32 s21, s5, 0"); e("s_mov_b32 s22, 2359296")
        S.vmop("buffer_load_dword v17, v113, s[20:23], 0 offen", "PF")
for k, a in enumerate(PRE[:npre]):
    if args.l2pf and k == args.l2at: l2pf()
    S.atom(a)

frs = []
mf = []
def frag(kind, s, base, off, t=None):
    frs.append(dict(kind=kind, s=s, base=base, off=off, t=t, first=None, last=None)); return len(frs) - 1
def section(s, tiles):
    for h in range(2):
        ms = [2 * t + k for t in tiles for k in range(2)]
        G = {m: frag("G", s, GB + h, (s % 3) * 8192 + m * 2048, m // 2) for m in ms}
        z = s == 0 and h == 0
        Bs = {}
        if args.morder == 0: seq = [(n, m) for n in range(8) for m in ms]
        elif args.morder == 1: seq = [(n, m) for n2 in range(0, 8, 4) for k, m in enumerate(ms) for n in (range(n2, n2 + 4) if k % 2 == 0 else range(n2 + 3, n2 - 1, -1))]
        else: seq = [(n, m) for n in range(8) for m in (ms if n % 2 == 0 else ms[::-1])]
        for (n, m) in seq:
            if n not in Bs: Bs[n] = frag("B", s, vB, wslot(s) + h * HS + n * 1024 + (64 if n >= 4 else 0))
            mf.append([acc(m, n), G[m], Bs[n], z, False, s])
        xf = frag("X", s, vX, wslot(s) + h * 1024)
        for m in ms: mf.append([accx(m), xf, G[m], z, False, s])
marks = {}
for s in range(9 - args.split):
    marks[len(mf)] = ("stage", s); section(s, (0, 1))
if args.split:
    for t in (0, 1):
        for s in range(9 - args.split, 9):
            marks[len(mf)] = ("half", s, t); section(s, (t,))
for i, m in enumerate(mf):
    for f in (m[1], m[2]):
        if frs[f]["first"] is None: frs[f]["first"] = i
        frs[f]["last"] = i
ordA = sorted([f for f in range(len(frs)) if frs[f]["kind"] in "FG"], key=lambda f: frs[f]["first"])
ordW = sorted([f for f in range(len(frs)) if frs[f]["kind"] in "BX"], key=lambda f: frs[f]["first"])
RES = POOL[-3:]
pool = list(POOL[:-3]); where = {}; nA = [0]; nW = [0]; barred = set(); side = []; heldA = [0]
lasta = {}
for f in ordA: lasta[frs[f]["s"]] = f
issued_at = {}
def emit_read(f, i):
    fr = frs[f]
    r = pool.pop(0); where[f] = r; issued_at[f] = i
    if fr["kind"] == "X":
        S.dsop(f"ds_read_b64_tr_b16 v[{r}:{r+1}], v{fr['base']} offset:{fr['off']}", ("R0", f))
        S.dsop(f"ds_read_b64_tr_b16 v[{r+2}:{r+3}], v{fr['base']} offset:{fr['off']+256}", ("R", f))
    else:
        S.dsop(f"ds_read_b128 v[{r}:{r+3}], v{fr['base']} offset:{fr['off']}", ("R", f))
def try_A(i, force=False):
    if nA[0] >= len(ordA) or not pool: return False
    f = ordA[nA[0]]; fr = frs[f]; s = fr["s"]
    if not force and (fr["first"] - i > args.laa or heldA[0] >= args.maxa): return False
    if args.hdma and s >= 3 and fr["t"] == 1:
        if s not in barred:
            if not force: return False
            while s not in barred: assert try_W(i, True)
    else:
        if ("A", s, fr["t"]) not in S.vm:
            assert not force
            return False
        S.needv(("A", s, fr["t"]))
    emit_read(f, i); nA[0] += 1; heldA[0] += 1
    if f == lasta[s] and s + 3 <= 8:
        side.extend([[], [], [lambda f=f: S.need([("R", f)], lazy=False)]])
        side.extend(x for a in dma_atoms(s + 3) for x in [a] + [[]] * args.dgap)
    return True
def try_W(i, force=False):
    if nW[0] >= len(ordW) or not pool: return False
    f = ordW[nW[0]]; fr = frs[f]; s = fr["s"]
    if not force and fr["first"] - i > (args.la6 if mf[i][5] == 8 - args.split else args.la): return False
    if s not in barred:
        prevw = ordW[nW[0] - 1]
        prevs = [prevw]
        if args.hdma and s - 1 + 3 <= 8:
            if lasta[s - 1] not in issued_at:
                if not force: return False
                while lasta[s - 1] not in issued_at: assert try_A(i, True)
            prevs.append(lasta[s - 1])
        if not force and i - max(issued_at[x] for x in prevs) < args.bdelay and fr["first"] - i > 2: return False
        S.need([("R", x) for x in prevs], lazy=False)
        S.ins("s_barrier"); barred.add(s)
        if s in (1, 4, 6, 8): stamp()
    emit_read(f, i); nW[0] += 1
    return True
def store_atoms(t):
    at = []
    for m in (2 * t, 2 * t + 1):
        for r in range(4):
            def go(m=m, r=r):
                S.valu_reads([acc(m, n) for n in range(8)])
                tmp = TMP[(4 * m + r) % len(TMP)]
                for p in range(4): S.ins(f"v_cvt_pk_bf16_f32 v{tmp+p}, v{acc(m,2*p)+r}, v{acc(m,2*p+1)+r}")
                S.ins(f"s_mov_b32 s52, {(16*m + r) * 9216}")
                if not args.nostore: S.vmop(f"buffer_store_dwordx4 v[{tmp}:{tmp+3}], v{vG}, s[32:35], s52 offen {args.store}", "O")
            go.cost = 60
            at.append([go])
    for m in (2 * t, 2 * t + 1):
        a = accx(m)
        def gx(a=a, m=m):
            S.valu_reads([a])
            S.ins(f"v_cvt_pk_bf16_f32 v{a}, v{a}, v{a+1}"); S.ins(f"v_cvt_pk_bf16_f32 v{a+1}, v{a+2}, v{a+3}")
            S.ins(f"s_mov_b32 s52, {16*m*9216}")
            if not args.nostore: S.vmop(f"buffer_store_dwordx2 v[{a}:{a+1}], v{vGx}, s[32:35], s52 offen {args.xstore}", "O")
        gx.cost = 50
        at.append([gx])
    return at
TMP = []
S.ins("s_barrier"); barred.add(0); stamp()
side.extend(PRE[npre:])
try_A(0); try_W(0); try_A(0); try_W(0); try_W(0); try_A(0); try_W(0); try_W(0)
waited = 0
for i, m in enumerate(mf):
    d, fa, fb, zero, big, s = m
    S.now = i
    if i in marks:
        mk = marks[i]
        if mk[0] == "half" and mk[2] == 1 and s == 9 - args.split:
            stamp()
            assert not side
            TMP.extend(RES)
            side.extend(x for a in store_atoms(0) for x in [a] + [[]] * args.sgap)
    for f in (fa, fb):
        while f not in where:
            assert (try_A if frs[f]["kind"] in "FG" else try_W)(i, True), i
    S.need([("R", fa), ("R", fb)])
    if i in (0, 36): stamp()
    S.mfma(d, where[fa], where[fb], zero, big)
    for f in (fa, fb):
        if frs[f]["last"] == i:
            pool.append(where[f])
            if frs[f]["kind"] in "FG": heldA[0] -= 1
    if not args.gap:
        k = 0
        if try_W(i): k += 1
        if try_A(i): k += 1
        if k < 2: try_W(i)
        if side: S.atom(side.pop(0))
        continue
    budget = (args.gap if big else args.gaps); S.spent = 0
    def urgent(q, n): return n[0] < len(q) and frs[q[n[0]]]["first"] - i <= args.urg
    if side and not side[0]: side.pop(0)
    elif side and not (urgent(ordW, nW) or urgent(ordA, nA)) and (acost(side[0]) <= budget or (waited >= args.maxw)):
        S.atom(side.pop(0)); waited = 0
    elif side: waited += 1
    while True:
        if S.spent + args.cds > budget + 2 and not (S.spent == 0 and (urgent(ordW, nW) or urgent(ordA, nA))): break
        fw = frs[ordW[nW[0]]]["first"] if nW[0] < len(ordW) else 1 << 30
        fa_ = frs[ordA[nA[0]]]["first"] if nA[0] < len(ordA) else 1 << 30
        tries = (try_W, try_A) if fw <= fa_ else (try_A, try_W)
        if not (tries[0](i) or tries[1](i)): break
while side: S.atom(side.pop(0))
stamp()
TMP.extend(pool[:5])
for t in ((1,) if args.split else (0, 1)):
    for a in store_atoms(t): S.atom(a)
stamp()
if args.stamp: e("s_waitcnt vmcnt(0)")
stamp_out(0, 1)
if args.probe >= 0:
    import mkprobe
    if args.probe == 9: e("s_waitcnt vmcnt(0)"); e("s_memrealtime s[88:89]")
    e(mkprobe.outcode(0, 0))
role[0] = "p"
e("s_endpgm")

nst[0] = 0
e(".p2align 6")
e("L_producer:")
PLAN = [int(x) for x in args.plan.split(',')]
NS = max(PLAN[i] - i for i in range(9)) + 1
vQ, vQx, vS, vSx, vWm, vWx = 0, 1, 2, 3, 4, 5
TP = 20; TPX = 36
def SC(i): return 232 if (i == 8 and args.split == 3) else 40 + 16 * (i & 1)
def R(i): return 72 + 36 * (i % NS)
assert R(NS - 1) + 36 <= (232 if args.split == 3 else 256)
e("s_mov_b32 s40, 0")
for i in range(1, 8): e(f"s_mov_b32 s{40+i}, {i*QROW}")
e(f"v_lshrrev_b32 v6, 5, v{VL}"); e(f"v_and_b32 v7, 31, v{VL}")
e("s_lshl_b32 s52, s39, 4")
e("v_lshl_add_u32 v8, v6, 3, s52"); e(f"v_mul_u32_u24 v8, {QROW}, v8"); e("v_lshl_add_u32 v8, v7, 4, v8")
e("s_lshl_b32 s50, s55, 2"); e(f"v_add_u32 v{vQ}, s50, v8")
e(f"v_lshrrev_b32 v8, 2, v{VL}"); e("v_add_u32 v8, s52, v8"); e(f"v_mul_u32_u24 v8, {QROW}, v8")
e(f"v_and_b32 v9, 3, v{VL}"); e("v_lshl_add_u32 v8, v9, 4, v8"); e("s_lshl_b32 s50, s54, 2"); e(f"v_add_u32 v{vQx}, s50, v8")
e(f"s_mov_b32 s22, {64*QROW}"); e("s_mov_b32 s23, 0x20000")
e("s_waitcnt lgkmcnt(0)")
el(set_q())
def raw_list(i):
    r = R(i)
    out = [[f"buffer_load_dwordx4 v[{r+4*k}:{r+4*k+3}], v{vQ}, s[20:23], s{40+k} offen {args.qflags}"] for k in range(8)]
    out.append([f"buffer_load_dwordx4 v[{r+32}:{r+35}], v{vQx}, s[20:23], 0 offen {args.qflags}"] + step() + set_q())
    return out
vm = []
def raw_now(i):
    for g in raw_list(i): el(g)
    vm.extend([i] * 9)
raw_now(0); raw_now(1)
if args.icpf == 1:
    e("s_cmp_ge_u32 s2, 8"); e("s_cbranch_scc1 L_noicpf")
    e("s_getpc_b64 s[56:57]"); e("L_pc:")
    e(f"s_sub_u32 s56, s56, L_pc - {NAME}"); e("s_subb_u32 s57, s57, 0")
    e(f"v_lshl_add_u32 v12, s39, 6, v{VL}"); e("v_lshlrev_b32 v12, 7, v12")
    e(f"v_cmp_gt_u32 vcc, L_end - {NAME}, v12"); e("s_and_saveexec_b64 s[58:59], vcc"); e("s_cbranch_execz L_icpf2")
    e("global_load_dword v13, v12, s[56:57]")
    e("L_icpf2:"); e("s_mov_b64 exec, s[58:59]")
    e("L_noicpf:")
e("s_lshr_b32 s52, s39, 1"); e(f"s_mul_i32 s52, s52, {HS}"); e("s_and_b32 s53, s39, 1"); e("s_lshl_b32 s53, s53, 9"); e("s_add_u32 s52, s52, s53"); e(f"s_add_u32 s52, s52, {WB}")
e(f"v_lshl_add_u32 v{vWm}, v6, 8, s52"); e("v_and_b32 v8, 1, v7"); e(f"v_mul_u32_u24 v8, 4160, v8"); e(f"v_add_u32 v{vWm}, v{vWm}, v8")
e("v_lshrrev_b32 v8, 1, v7"); e(f"v_lshl_add_u32 v{vWm}, v8, 4, v{vWm}")
e(f"v_bfe_u32 v8, v{VL}, 4, 1"); e(f"v_and_b32 v10, 15, v{VL}")
e("s_lshl_b32 s52, s39, 9"); e(f"s_add_u32 s52, s52, {WB + XO}")
e(f"v_lshl_add_u32 v{vWx}, v6, 7, s52"); e(f"v_lshl_add_u32 v{vWx}, v8, 8, v{vWx}"); e(f"v_lshl_add_u32 v{vWx}, v10, 3, v{vWx}")
e("s_lshr_b32 s8, s39, 1"); e("s_mul_i32 s52, s8, 576"); e(f"s_add_u32 s52, s52, {TBL}")
e(f"v_lshl_add_u32 v{vS}, v7, 4, s52"); e("s_add_u32 s52, s52, 512"); e(f"v_lshl_add_u32 v{vSx}, v9, 4, s52")
def rd_scales(i):
    c = SC(i); o = i * 1152
    return [f"ds_read_b128 v[{c}:{c+3}], v{vS} offset:{o}", f"ds_read_b128 v[{c+4}:{c+7}], v{vS} offset:{o+TZ}",
            f"ds_read_b128 v[{c+8}:{c+11}], v{vSx} offset:{o}", f"ds_read_b128 v[{c+12}:{c+15}], v{vSx} offset:{o+TZ}"]
vD = 10
if args.hdma:
    e("s_mul_i32 s52, s36, 294912"); e("s_add_u32 s4, s4, s52"); e("s_addc_u32 s5, s5, 0"); e("s_mov_b32 s18, 293888"); e("s_mov_b32 s19, 0x20000")
    e(f"v_lshrrev_b32 v8, 3, v{VL}"); e("s_lshl_b32 s52, s39, 6"); e("s_add_u32 s52, s52, 32"); e("v_add_u32 v8, s52, v8"); e("v_mul_u32_u24 v8, 1152, v8")
    e(f"v_lshrrev_b32 v9, 4, v{VL}"); e(f"v_and_b32 v{vD}, 7, v{VL}"); e(f"v_xor_b32 v{vD}, v9, v{vD}")
    e(f"v_lshl_add_u32 v{vD}, v{vD}, 4, v8"); e(f"v_xor_b32 v{vD+1}, 64, v{vD}")
    e("s_mul_i32 s36, s39, 24576"); e("s_add_u32 s36, s36, 4096")
    for i in range(1, 4): e(f"s_mov_b32 s{56+i}, {i*8192}")
def hdma(p):
    out = [[f"s_add_u32 s53, s3, {p}", "s_cmp_ge_u32 s53, 9", "s_cselect_b32 s51, 9, 0", "s_sub_u32 s53, s53, s51", "s_lshl_b32 s51, s53, 7",
            "s_add_u32 s16, s4, s51", "s_addc_u32 s17, s5, 0", f"s_add_u32 m0, s36, {(p % 3) * 8192}", "s_nop 0"]]
    for i in range(4):
        g = [f"buffer_load_dwordx4 v{vD + (i & 1)}, s[16:19], {'0' if i == 0 else f's{56+i}'} offen offset:{i*1024} {args.aflags} lds"]
        if i == 0: out[0] += g
        else: out.append(g)
    return out
if args.pprio: e(f"s_setprio {args.pprio}")
e("s_barrier")
el(rd_scales(0))
e("s_waitcnt lgkmcnt(0)")
nextraw = 2
for i in range(9):
    r = R(i); sc = SC(i); so = wslot(i)
    younger = len(vm) - 1 - (len(vm) - 1 - vm[::-1].index(i))
    e(f"s_waitcnt vmcnt({younger})")
    if i in (0, 1, 4, 8): stamp()
    work = []
    for j in range(4):
        work += [f"v_cvt_f32_i32 v{r+4*k+j}, v{r+4*k+j}" for k in range(8)]
        work += [f"v_fma_f32 v{r+4*k+j}, v{r+4*k+j}, v{sc+j}, -v{sc+4+j}" for k in range(8)]
        work += [f"v_cvt_pk_bf16_f32 v{TP+4*j+p}, v{r+8*p+j}, v{r+8*p+4+j}" for p in range(4)]
        work.append(f"ds_write_b128 v{vWm}, v[{TP+4*j}:{TP+4*j+3}] offset:{so + j*1024}")
        if j == 0 and i < (7 if args.split == 3 else 8): work += rd_scales(i + 1)
        if j == 2 and i == 6 and args.split == 3: work += rd_scales(8)
        if j == 1:
            work += [f"v_cvt_f32_i32 v{r+32+c}, v{r+32+c}" for c in range(4)]
            work += [f"v_fma_f32 v{r+32+c}, v{r+32+c}, v{sc+8+c}, -v{sc+12+c}" for c in range(4)]
            work += [f"v_cvt_pk_bf16_f32 v{TPX+p}, v{r+32+2*p}, v{r+33+2*p}" for p in range(2)]
            work.append(f"ds_write_b64 v{vWx}, v[{TPX}:{TPX+1}] offset:{so}")
    mems = []
    if args.hdma and 2 <= i <= 7:
        mems += hdma(i + 1); vm.extend([("A", i + 1)] * 4)
    want = PLAN[i]
    assert want - i < NS
    while nextraw <= want:
        mems += raw_list(nextraw); vm.extend([nextraw] * 9); nextraw += 1
    if mems:
        if i == 0: el(work[:args.d0head]); work = work[args.d0head:]
        n = len(mems); per = (len(work) - args.vtail) / n; k = 0
        for idx, g in enumerate(mems):
            el(g)
            k2 = len(work) if idx == n - 1 else int(round(per * (idx + 1)))
            el(work[k:k2]); k = k2
    else: el(work)
    if args.hdma and i >= 3: e(f"s_waitcnt vmcnt({vm[::-1].index(('A', i))})")
    e("s_waitcnt lgkmcnt(0)")
    if i in (0, 1, 4, 8): stamp()
    e("s_barrier")
assert nextraw == 9
stamp_out(12, 13)
e("L_end:")
e("s_endpgm")
e('.section .rodata,"a"'); e(".p2align 6")
e(f".amdhsa_kernel {NAME}")
e("  .amdhsa_next_free_vgpr 256"); e(f"  .amdhsa_next_free_sgpr {102 if args.stamp else 64}"); e("  .amdhsa_accum_offset 256")
e("  .amdhsa_group_segment_fixed_size 0"); e("  .amdhsa_kernarg_size 56")
e("  .amdhsa_user_sgpr_count 2"); e("  .amdhsa_user_sgpr_kernarg_segment_ptr 1"); e("  .amdhsa_system_sgpr_workgroup_id_x 1")
e("  .amdhsa_float_denorm_mode_32 3")
e(".end_amdhsa_kernel")
if args.kill:
    ip = L.index("L_producer:")
    for i, l in enumerate(L):
        c = i < ip; k = args.kill
        if c and "G" in k and re.match(r"ds_read_b128 v\[\d+:\d+\], v[45] ", l): L[i] = "s_nop 0"
        if not c and "W" in k and l.startswith("ds_write"): L[i] = "s_nop 0"
        if not c and "V" in k and re.match(r"v_(cvt|fma)", l): L[i] = "s_nop 0"
        if "D" in k and l.endswith("lds"): L[i] = "s_nop 0"
        if not c and "E" in k and re.match(r"buffer_load_dwordx4 v\[\d+:\d+\], v1, ", l): L[i] = l.replace(", v1, s[20:23], 0 ", ", v0, s[20:23], s47 ")
        if c and "R" in k and l.startswith("ds_read"): L[i] = "s_nop 0"
        if not c and "Q" in k and l.startswith("buffer_load"): L[i] = "s_nop 0"
txt = "\n".join(L) + "\n"
if args.probe >= 0:
    txt = txt.replace(f"; @launch grid=(256,1,1) block=(512,1,1) lds={LDS}", f"; @launch kernel={NAME} grid=(256,1,1) block=(512,1,1) lds={LDS}\n; @launch kernel=spin_kernel grid=(1,1,1) block=(64,1,1) lds=0")
    txt = txt.replace("next_free_sgpr 64", "next_free_sgpr 96")
    txt = txt.replace('.section .rodata,"a"', mkprobe.spin(args.pmult, args.pstat) + '.section .rodata,"a"', 1) + mkprobe.SPINKD
open(args.o, "w").write(txt)
```
